```python
import torch

def _softmax(x, axis=-1):
    return torch.softmax(x, dim=axis)

def _gelu(x):
    return torch.nn.functional.gelu(x, approximate='tanh')

def _silu(x):
    return torch.nn.functional.silu(x)

def _sigmoid(x):
    return torch.sigmoid(x)

def _layernorm(x, axis=-1, eps=1e-05):
    m = x.mean(dim=axis, keepdim=True)
    v = x.var(dim=axis, keepdim=True, unbiased=False)
    return (x - m) / torch.sqrt(v + eps)

def _scatter_add(tgt, idx, src, axis=0):
    return tgt.clone().index_add_(axis, idx, src)

def _segment_sum(src, seg, n):
    out = torch.zeros((n,) + src.shape[1:], dtype=src.dtype)
    return out.index_add_(0, seg, src)

def _pad(x, pw):
    flat = tuple((v for pair in reversed(pw) for v in pair))
    return torch.nn.functional.pad(x, flat)
kernel_name = 'adaLN_cond__grouped_kv_mqa__glu_gated_reglu__prompt'

def setup_inputs():

    _w = lambda a: (lambda t: t.to(torch.bfloat16) if t.is_floating_point() else t)(torch.as_tensor(a))

    def _A_setup():
        B, S, D, H = (1, 2048, 512, 32)
        Dh = D // H
        return {'x': _w((lambda *s: torch.randn(*s, dtype=torch.bfloat16) * 0.05)(B, S, D)), 'wq': _w((lambda *s: torch.randn(*s, dtype=torch.bfloat16) * 0.1)(D, H * Dh)), 'wk': _w((lambda *s: torch.randn(*s, dtype=torch.bfloat16) * 0.1)(D, Dh)), 'wv': _w((lambda *s: torch.randn(*s, dtype=torch.bfloat16) * 0.1)(D, Dh)), 'wo': _w((lambda *s: torch.randn(*s, dtype=torch.bfloat16) * 0.1)(H * Dh, D))}
    _A_in = _A_setup()

    def _B_setup():
        B, S, D, F = (1, 2048, 512, 1792)
        return {'x': _w((lambda *s: torch.randn(*s, dtype=torch.bfloat16) * 0.05)(B, S, D)), 'W_gate': _w((lambda *s: torch.randn(*s, dtype=torch.bfloat16) * 1.6)(D, F) * (2.0 / D) ** 0.5), 'W_up': _w((lambda *s: torch.randn(*s, dtype=torch.bfloat16) * 1.6)(D, F) * (2.0 / D) ** 0.5), 'W_down': _w((lambda *s: torch.randn(*s, dtype=torch.bfloat16) * 1.6)(F, D) * (1.0 / F) ** 0.5)}
    _B_in = _B_setup()
    return {'A_x': _A_in['x'], 'A_wq': _A_in['wq'], 'A_wk': _A_in['wk'], 'A_wv': _A_in['wv'], 'A_wo': _A_in['wo'], 'B_x': _B_in['x'], 'B_W_gate': _B_in['W_gate'], 'B_W_up': _B_in['W_up'], 'B_W_down': _B_in['W_down'], 'c': _w((lambda *s: torch.randn(*s, dtype=torch.bfloat16) * 0.2)(1, 512) * 8.0), 'w_mod': _w((lambda *s: torch.randn(*s, dtype=torch.bfloat16) * 0.2)(512, 6 * 512) * 512 ** (-0.5) * 8.0)}

def reference(A_x, A_wq, A_wk, A_wv, A_wo, B_x, B_W_gate, B_W_up, B_W_down, c, w_mod):

    def _A_ref(x, wq, wk, wv, wo):
        B, S, D = x.shape
        H = 32
        Dh = D // H
        q = (lambda x, *d: x.permute(*d))((x @ wq).reshape(B, S, H, Dh), 0, 2, 1, 3)
        k = x @ wk
        v = x @ wv
        scores = torch.einsum('bhqd,bkd->bhqk', q, k) * Dh ** (-0.5)
        p = _softmax(scores, axis=-1)
        o = torch.einsum('bhqk,bkd->bhqd', p, v)
        return (lambda x, *d: x.permute(*d))(o, 0, 2, 1, 3).reshape(B, S, H * Dh) @ wo

    def _B_ref(x, W_gate, W_up, W_down):
        gate = torch.einsum('bsd,df->bsf', x, W_gate)
        up = torch.einsum('bsd,df->bsf', x, W_up)
        gate = gate * (lambda x, dt: x.to(dt))(gate > 0, gate.dtype)
        h = gate * up
        return torch.einsum('bsf,fd->bsd', h, W_down)
    x = A_x
    mod = (_silu(c) @ w_mod).reshape(c.shape[0], 6, 1, -1)
    sa, ca, ga, sb, cb, gb = (mod[:, 0].clone(), mod[:, 1].clone(), mod[:, 2].clone(), mod[:, 3].clone(), mod[:, 4].clone(), mod[:, 5].clone())
    h = _layernorm(x, axis=-1) * (1 + ca) + sa
    x = x + ga * _A_ref(h, A_wq, A_wk, A_wv, A_wo)
    h = _layernorm(x, axis=-1) * (1 + cb) + sb
    x = x + gb * _B_ref(h, B_W_gate, B_W_up, B_W_down)
    return x
```

```python
from gen import *
from gen_rest import dpp_reduce, round_bf16_pair

DEBUG = False
def gen_k2(use_perm=False):
    k = Kern("k2_kernel")
    GRID = 256
    QF = 4; CN = 16; SA = 32; SB = 48; PA = 64; PB = 64; O = 80; OC = 96
    KB = [108, 112]; VB = [72, 116]
    WOF = 128
    vKA, vVA = 8, 9
    OBUF = 131072; STB = OBUF + 8448
    LDS = STB + 1024
    k.e(f"s_cmp_ge_u32 s2, {GRID}\ns_cbranch_scc1 {k.ref('end')}")
    k.e("s_load_dwordx2 s[16:17], s[0:1], 0\ns_load_dwordx2 s[18:19], s[0:1], 104")
    k.e("""v_lshrrev_b32 v1, 6, v0
v_and_b32 v2, 63, v0
s_nop 0
v_readfirstlane_b32 s3, v1
s_waitcnt lgkmcnt(0)""")
    k.srd(4, 16, 2048*512*2)
    k.srd(8, 18, WS_SIZE)
    k.e("v_lshlrev_b32 v3, 4, v2")
    k.e(f"s_lshl_b32 s20, s3, 14\ns_add_u32 s21, s20, {KF}")
    for i in range(4):
        k.e(f"s_mov_b32 m0, s20\ns_nop 0")
        for j in range(4):
            k.e(f"buffer_load_dwordx4 v3, s[8:11], s21 offen offset:{j*1024} lds")
        if i < 3:
            k.e("s_add_u32 s20, s20, 4096\ns_add_u32 s21, s21, 4096")
    k.e(f"""s_lshl_b32 s22, s2, 3
s_add_u32 s22, s22, s3
s_lshl_b32 s23, s22, 10
s_add_u32 s23, s23, {QB}
v_and_b32 v4, 31, v2
v_lshlrev_b32 v4, 5, v4
v_lshrrev_b32 v5, 5, v2
v_lshl_add_u32 v10, v5, 4, v4
buffer_load_dwordx4 {vr(QF,4)}, v10, s[8:11], s23 offen""")
    k.e(f"""v_mov_b32 v{vKA}, v3
v_and_b32 v11, 15, v2
v_lshl_add_u32 v11, v5, 4, v11
v_lshlrev_b32 v11, 4, v11
v_add_u32 v{vVA}, 65536, v11
s_mov_b32 s30, 0x0000ffff
s_mov_b32 s31, 0x0000ffff""")
    for i in range(16):
        k.e(f"v_mov_b32 v{CN+i}, 0\nv_mov_b32 v{O+i}, 0")
    for i in range(9):
        k.e(f"v_mov_b32 v{OC+i}, 0")
    for b in VB:
        for i in range(8):
            k.e(f"v_mov_b32 v{b+i}, 0x3f803f80")
    k.e("""s_mov_b32 s24, 0
s_mov_b32 s26, 0xff7fffff
s_mov_b32 s27, 0x71800000
s_mov_b32 s28, 0x4b800000
s_waitcnt vmcnt(0)
s_barrier""")
    k.e(f"s_branch {k.ref('slow')}")
    def rdK(t):
        k.e(f"ds_read_b128 {vr(KB[t&1],4)}, v{vKA} offset:{t*1024}")
    def rdV(t):
        b = VB[t & 1]
        k.e(f"""s_mov_b64 exec, s[30:31]
ds_read_b128 {vr(b,4)}, v{vVA} offset:{t*1024}
ds_read_b128 {vr(b+4,4)}, v{vVA} offset:{t*1024+512}
s_mov_b64 exec, -1""")
    def mfS(t):
        S = SA if (t & 1) == 0 else SB
        k.e(f"v_mfma_f32_32x32x16_bf16 {vr(S,16)}, {vr(KB[t&1],4)}, {vr(QF,4)}, {vr(CN,16)}")
    k.lab("chunk")
    k.e("s_mov_b32 s25, 0")
    k.lab("chunk_redo")
    for i in range(9):
        k.e(f"v_mov_b32 v{OC+i}, v{O+i}")
    rdK(0); rdK(1); rdV(0)
    k.e("s_waitcnt lgkmcnt(3)")
    mfS(0)
    for t in range(8):
        S = SA if (t & 1) == 0 else SB
        P = PA if (t & 1) == 0 else PB
        if t < 7:
            k.e("s_waitcnt lgkmcnt(2)")
            mfS(t + 1)
        if t + 2 <= 7: rdK(t + 2)
        if t + 1 <= 7: rdV(t + 1)
        if t == 0:
            k.e("s_nop 7")
        for q4 in range(4):
            for i in range(4):
                k.e(f"v_exp_f32 v{S+4*q4+i}, v{S+4*q4+i}")
            if q4 > 0:
                pass
            for d in range(2):
                a = S + 4*q4 + 2*d
                if use_perm:
                    k.e(f"v_perm_b32 v{P+2*q4+d}, v{a+1}, v{a}, s29")
                else:
                    k.e(f"v_cvt_pk_bf16_f32 v{P+2*q4+d}, v{a}, v{a+1}")
        n_after = 3 if t <= 5 else (2 if t == 6 else 0)
        k.e(f"s_waitcnt lgkmcnt({n_after})")
        Vb = VB[t & 1]
        k.e(f"v_mfma_f32_32x32x16_bf16 {vr(O,16)}, {vr(Vb,4)}, {vr(P,4)}, {vr(O,16)}")
        k.e(f"v_mfma_f32_32x32x16_bf16 {vr(O,16)}, {vr(Vb+4,4)}, {vr(P+4,4)}, {vr(O,16)}")
    k.e("s_nop 15\ns_nop 3")
    L = O + 8
    k.e(f"""s_cmp_lg_u32 s25, 0
s_cbranch_scc1 {k.ref('nochk')}
v_cmp_nlt_f32 vcc, v{L}, v12
s_cbranch_vccnz {k.ref('rollback')}""")
    k.lab("nochk")
    k.e(f"""v_cmp_lt_f32 vcc, s28, v{L}
s_cbranch_vccz {k.ref('next')}""")
    k.e(f"""v_frexp_exp_i32_f32 v13, v{L}
s_nop 0
v_sub_u32 v14, 0, v13
v_cvt_f32_i32 v15, v13""")
    for i in range(9):
        k.e(f"v_ldexp_f32 v{O+i}, v{O+i}, v14")
    for i in range(16):
        k.e(f"v_sub_f32 v{CN+i}, v{CN+i}, v15")
    k.lab("next")
    k.e(f"""s_add_u32 s24, s24, 1
v_add_u32 v{vKA}, 8192, v{vKA}
v_add_u32 v{vVA}, 8192, v{vVA}
s_mov_b32 s26, 0""")
    k.e(f"s_cmp_lg_u32 s24, 2\ns_cbranch_scc1 {k.ref('nopf')}")
    k.e(f"s_lshl_b32 s32, s3, 16\ns_add_u32 s32, s32, {WO}")
    for f in range(32):
        k.e(f"buffer_load_dwordx4 {vr(WOF+4*f,4)}, v3, s[8:11], s32 offen offset:{(f&3)*1024}")
        if (f & 3) == 3:
            k.e("s_add_u32 s32, s32, 4096")
    k.lab("nopf")
    k.e(f"s_cmp_lt_u32 s24, 8\ns_cbranch_scc1 {k.ref('chunk')}\ns_branch {k.ref('tail')}")
    k.lab("rollback")
    for i in range(9):
        k.e(f"v_mov_b32 v{O+i}, v{OC+i}")
    k.lab("slow")
    MX = 13
    rdK(0); rdK(1)
    k.e(f"v_mov_b32 v{MX}, 0xff7fffff")
    for t in range(8):
        k.e(f"s_waitcnt lgkmcnt({1 if t < 7 else 0})")
        mfS(t)
        if t + 2 <= 7:
            rdK(t + 2)
        k.e("s_nop 15\ns_nop 3")
        S = SA if (t & 1) == 0 else SB
        for i in range(8):
            k.e(f"v_max3_f32 v{MX}, v{S+2*i}, v{S+2*i+1}, v{MX}")
    k.e(f"""v_mov_b32 v14, v{MX}
s_nop 1
v_permlane32_swap_b32 v14, v{MX}
s_nop 1
v_max_f32 v{MX}, v14, v{MX}
v_ceil_f32 v{MX}, v{MX}
v_max_f32 v{MX}, s26, v{MX}
v_cvt_i32_f32 v14, v{MX}
v_sub_u32 v14, 0, v14""")
    for i in range(9):
        k.e(f"v_ldexp_f32 v{O+i}, v{O+i}, v14")
    for i in range(16):
        k.e(f"v_sub_f32 v{CN+i}, v{CN+i}, v{MX}")
    k.e(f"s_mov_b32 s25, 1\ns_branch {k.ref('chunk_redo')}")
    k.prologue_fix = True
    k.lab("tail")
    k.e(f"s_lshl_b32 s32, s3, 16\ns_add_u32 s32, s32, {WO + 2*16384}")
    for f in range(16):
        k.e(f"buffer_load_dwordx4 {vr(16+4*f,4)}, v3, s[8:11], s32 offen offset:{(f&3)*1024}")
        if (f & 3) == 3:
            k.e("s_add_u32 s32, s32, 4096")
    k.e(f"v_rcp_f32 v13, v{L}\ns_nop 0")
    for i in range(8):
        k.e(f"v_mul_f32 v{O+i}, v{O+i}, v13")
    for d in range(4):
        k.e(f"v_cvt_pk_bf16_f32 v{112+d}, v{O+2*d}, v{O+2*d+1}")
    if DEBUG:
        k.e(f"""v_and_b32 v14, 31, v2
v_lshlrev_b32 v14, 5, v14
v_lshrrev_b32 v15, 5, v2
v_lshl_add_u32 v14, v15, 3, v14
s_add_u32 s33, s23, {0x1800000 - QB}
buffer_store_dwordx2 v[112:113], v14, s[8:11], s33 offen
buffer_store_dwordx2 v[114:115], v14, s[8:11], s33 offen offset:16
v_lshlrev_b32 v14, 2, v2
s_lshl_b32 s33, s22, 9
s_add_u32 s33, s33, 0x1B00000
buffer_store_dword v{L}, v14, s[8:11], s33 offen
buffer_store_dword v{CN}, v14, s[8:11], s33 offen offset:256""")
    k.e(f"""v_and_b32 v14, 31, v2
v_lshlrev_b32 v14, 5, v14
v_lshrrev_b32 v15, 5, v2
v_lshl_add_u32 v14, v15, 3, v14
s_mul_i32 s33, s3, 1040
s_add_u32 s33, s33, {OBUF}
v_add_u32 v14, s33, v14
ds_write_b64 v14, v[112:113]
ds_write_b64 v14, v[114:115] offset:16
s_waitcnt lgkmcnt(0)
s_barrier""")
    k.e(f"""v_and_b32 v14, 7, v2
v_mul_u32_u24 v14, 1040, v14
v_lshrrev_b32 v15, 4, v2
v_lshl_add_u32 v14, v15, 4, v14
v_add_u32 v14, {OBUF}, v14""")
    BR = 80; ACC = 96
    def phase(cts, fr, first_wait):
        for s in range(4):
            k.e(f"ds_read_b128 {vr(BR+4*s,4)}, v14 offset:{64*s}")
        if first_wait is not None:
            k.e(f"s_waitcnt vmcnt({first_wait})")
        for s in range(16):
            issued = min(16, 4 + s)
            k.e(f"s_waitcnt lgkmcnt({issued - (s+1)})")
            for ct in cts:
                c = "0" if s == 0 else vr(ACC+4*ct, 4)
                k.e(f"v_mfma_f32_16x16x32_bf16 {vr(ACC+4*ct,4)}, {vr(fr(ct,s),4)}, {vr(BR+4*(s&3),4)}, {c}")
            if s + 4 < 16:
                k.e(f"ds_read_b128 {vr(BR+4*(s&3),4)}, v14 offset:{64*(s+4)}")
    phase([0, 1], lambda ct, s: WOF + 4*(16*ct + s), 16)
    k.e(f"s_lshl_b32 s32, s3, 16\ns_add_u32 s32, s32, {WO + 3*16384}")
    for f in range(16):
        k.e(f"buffer_load_dwordx4 {vr(128+4*f,4)}, v3, s[8:11], s32 offen offset:{(f&3)*1024}")
        if (f & 3) == 3:
            k.e("s_add_u32 s32, s32, 4096")
    k.e(f"""s_lshl_b32 s33, s3, 6
v_lshl_add_u32 v112, v15, 2, s33
v_lshlrev_b32 v113, 2, v112
s_mov_b32 s34, {MODF + 1024*4}
s_mov_b32 s35, {MODF + 1536*4}
s_mov_b32 s36, {MODF + 2048*4}""")
    for i, sr in enumerate((34, 35, 36)):
        for ct in range(4):
            k.e(f"buffer_load_dwordx4 {vr(192+16*i+4*ct,4)}, v113, s[8:11], s{sr} offen offset:{64*ct}")
    k.e(f"""v_and_b32 v114, 7, v2
v_lshlrev_b32 v114, 10, v114
v_lshl_add_u32 v114, v112, 1, v114
s_lshl_b32 s37, s2, 13""")
    for ct in range(4):
        k.e(f"buffer_load_dwordx2 {vr(240+2*ct,2)}, v114, s[4:7], s37 offen offset:{32*ct}")
    phase([2], lambda ct, s: 16 + 4*s, 32)
    phase([3], lambda ct, s: 128 + 4*s, 16)
    k.e("s_waitcnt vmcnt(0)\ns_nop 7")
    X = 16
    for i in range(0, 16, 2):
        round_bf16_pair(k, ACC+i, ACC+i+1, 115)
    for i in range(16):
        k.e(f"v_mul_f32 v{ACC+i}, v{ACC+i}, v{192+i}")
    for i in range(0, 16, 2):
        round_bf16_pair(k, ACC+i, ACC+i+1, 115)
    for d in range(8):
        k.e(f"v_lshlrev_b32 v{X+2*d}, 16, v{240+d}\nv_and_b32 v{X+2*d+1}, 0xffff0000, v{240+d}")
    for i in range(16):
        k.e(f"v_add_f32 v{X+i}, v{X+i}, v{ACC+i}")
    for d in range(8):
        k.e(f"v_cvt_pk_bf16_f32 v{32+d}, v{X+2*d}, v{X+2*d+1}")
    for d in range(8):
        k.e(f"v_lshlrev_b32 v{X+2*d}, 16, v{32+d}\nv_and_b32 v{X+2*d+1}, 0xffff0000, v{32+d}")
    k.e(f"""v_and_b32 v116, 15, v2
v_cmp_gt_u32 vcc, 8, v116
s_add_u32 s38, s37, {X1}
s_and_saveexec_b64 s[40:41], vcc""")
    for ct in range(4):
        k.e(f"buffer_store_dwordx2 {vr(32+2*ct,2)}, v114, s[8:11], s38 offen offset:{32*ct}")
    k.e("s_mov_b64 exec, s[40:41]")
    def xreduce(reg, tmp):
        k.e(f"""v_mov_b32 v{tmp}, v{reg}
s_nop 1
v_permlane16_swap_b32 v{tmp}, v{reg}
s_nop 1
v_add_f32 v{reg}, v{tmp}, v{reg}
v_mov_b32 v{tmp}, v{reg}
s_nop 1
v_permlane32_swap_b32 v{tmp}, v{reg}
s_nop 1
v_add_f32 v{reg}, v{tmp}, v{reg}""")
    def wgreduce(reg, off):
        k.e(f"""v_lshlrev_b32 v117, 2, v2
s_lshl_b32 s39, s3, 5
v_add_u32 v117, s39, v117
v_cmp_gt_u32 vcc, 8, v2
s_and_saveexec_b64 s[40:41], vcc
ds_write_b32 v117, v{reg} offset:{off}
s_mov_b64 exec, s[40:41]
s_waitcnt lgkmcnt(0)
s_barrier
v_and_b32 v117, 7, v2
v_lshlrev_b32 v117, 2, v117""")
        for w in range(8):
            k.e(f"ds_read_b32 v{120+w}, v117 offset:{off + 32*w}")
        k.e("s_waitcnt lgkmcnt(0)")
        k.e(f"v_add_f32 v{reg}, v120, v121")
        for w in range(2, 8):
            k.e(f"v_add_f32 v{reg}, v{reg}, v{120+w}")
    SM = 118
    k.e(f"v_add_f32 v{SM}, v{X}, v{X+1}")
    for i in range(2, 16):
        k.e(f"v_add_f32 v{SM}, v{SM}, v{X+i}")
    xreduce(SM, 119)
    wgreduce(SM, 0)
    k.e(f"s_mov_b32 s42, 0x3b000000\nv_mul_f32 v{SM}, s42, v{SM}")
    for i in range(16):
        k.e(f"v_sub_f32 v{X+i}, v{X+i}, v{SM}")
    k.e(f"v_mul_f32 v{SM}, v{X}, v{X}")
    for i in range(1, 16):
        k.e(f"v_fmac_f32 v{SM}, v{X+i}, v{X+i}")
    xreduce(SM, 119)
    wgreduce(SM, 256)
    k.e(f"""v_mov_b32 v119, 0x3727c5ac
v_fma_f32 v{SM}, v{SM}, s42, v119
v_rsq_f32 v{SM}, v{SM}
s_nop 0""")
    for i in range(16):
        k.e(f"v_mul_f32 v{X+i}, v{X+i}, v{SM}")
    for i in range(16):
        k.e(f"v_add_f32 v{224+i}, 1.0, v{224+i}")
    for i in range(0, 16, 2):
        round_bf16_pair(k, 224+i, 225+i, 115)
    for i in range(16):
        k.e(f"v_fma_f32 v{X+i}, v{X+i}, v{224+i}, v{208+i}")
    for d in range(8):
        k.e(f"v_cvt_pk_bf16_f32 v{32+d}, v{X+2*d}, v{X+2*d+1}")
    k.e(f"""v_and_b32 v116, 7, v2
s_and_b32 s43, s2, 3
s_lshl_b32 s43, s43, 3
v_add_u32 v116, s43, v116
v_lshrrev_b32 v117, 5, v2
v_lshl_add_u32 v116, v117, 5, v116
v_lshlrev_b32 v116, 4, v116
v_bfe_u32 v117, v2, 4, 1
v_lshl_add_u32 v116, v117, 3, v116
s_lshr_b32 s43, s2, 2
s_lshl_b32 s43, s43, 15
s_lshl_b32 s44, s3, 12
s_add_u32 s43, s43, s44
s_add_u32 s43, s43, {H2F}
v_and_b32 v117, 15, v2
v_cmp_gt_u32 vcc, 8, v117
s_and_saveexec_b64 s[40:41], vcc""")
    for ct in range(4):
        k.e(f"buffer_store_dwordx2 {vr(32+2*ct,2)}, v116, s[8:11], s43 offen offset:{1024*ct}")
    k.lab("end")
    k.e("s_endpgm")
    idx = [i for i, l in enumerate(k.L) if "s_mov_b32 s24, 0" in l][0]
    k.L.insert(idx, "    v_mov_b32 v12, 0x71800000")
    return k, GRID, 512, LDS, 256
```

```python
from gen import *
from gen_rest import round_bf16_pair

def ar(a, n):
    return f"a[{a}:{a+n-1}]"

def gen_k4(NB=4):
    k = Kern("k4_kernel")
    GRID = 256
    STG = 28672
    k.e(f"s_cmp_ge_u32 s2, {GRID}\ns_cbranch_scc1 {k.ref('end')}")
    k.e("s_load_dwordx2 s[18:19], s[0:1], 104")
    k.e("""v_lshrrev_b32 v1, 6, v0
v_and_b32 v2, 63, v0
s_and_b32 s20, s2, 15
s_lshr_b32 s21, s2, 4
v_readfirstlane_b32 s3, v1
v_lshlrev_b32 v3, 4, v2
s_waitcnt lgkmcnt(0)""")
    k.srd(8, 18, WS_SIZE)
    k.e(f"""s_mul_i32 s22, s20, {7*32768}
s_lshl_b32 s23, s3, 10
s_add_u32 s22, s22, s23
s_add_u32 s22, s22, {WGU}""")
    def dma(st):
        buf = st % NB
        for i in range(7):
            k.e(f"""s_add_u32 s24, s23, {buf*STG + i*4096}
s_mov_b32 m0, s24
s_add_u32 s25, s22, {i*32768 + st*4096}
buffer_load_dwordx4 v3, s[8:11], s25 offen lds""")
    dma(0)
    k.e(f"""s_lshl_b32 s26, s21, 2
s_add_u32 s26, s26, s3
s_lshl_b32 s27, s26, 15
s_add_u32 s27, s27, {H2F}""")
    for s in range(32):
        k.e(f"buffer_load_dwordx4 {vr(128+4*s,4)}, v3, s[8:11], s27 offen offset:{(s&3)*1024}")
        if (s & 3) == 3:
            k.e("s_add_u32 s27, s27, 4096")
    dma(1); dma(2)
    AB = [16, 44]
    def reads(kap):
        st, s4 = kap >> 2, kap & 3
        base = (st % NB) * STG + s4 * 1024
        for i in range(7):
            off = base + i * 4096
            if off < 65536:
                k.e(f"ds_read_b128 {vr(AB[kap&1]+4*i,4)}, v3 offset:{off}")
            else:
                k.e(f"ds_read_b128 {vr(AB[kap&1]+4*i,4)}, v4 offset:{off-65536}")
    k.e("v_add_u32 v4, 65536, v3")
    k.e("s_waitcnt vmcnt(14)\ns_barrier")
    reads(0)
    for kap in range(32):
        st, s4 = kap >> 2, kap & 3
        if kap + 1 < 32:
            if ((kap + 1) & 3) == 0:
                nst = st + 1
                k.e(f"s_waitcnt vmcnt({7 if nst < 7 else 0})\ns_barrier")
                if nst + 2 <= 7:
                    dma(nst + 2)
            reads(kap + 1)
            k.e("s_waitcnt lgkmcnt(7)")
        else:
            k.e("s_waitcnt lgkmcnt(0)")
        for i in range(7):
            c = "0" if kap == 0 else ar(16*i, 16)
            k.e(f"v_mfma_f32_32x32x16_bf16 {ar(16*i,16)}, {vr(AB[kap&1]+4*i,4)}, {vr(128+4*kap,4)}, {c}")
    k.e("s_nop 15\ns_nop 3")
    k.e(f"""s_mul_i32 s27, s26, 114688
s_mul_i32 s28, s20, 7168
s_add_u32 s27, s27, s28
s_add_u32 s27, s27, {HHF}""")
    for i in range(7):
        T = 16 + 24 * (i & 1)
        for r in range(16):
            k.e(f"v_accvgpr_read_b32 v{T+r}, a{16*i+r}")
        for r in range(8):
            k.e(f"v_max_f32 v{T+r}, 0, v{T+r}")
        for r in range(8):
            k.e(f"v_mul_f32 v{T+r}, v{T+r}, v{T+8+r}")
        for d in range(4):
            k.e(f"v_cvt_pk_bf16_f32 v{T+16+d}, v{T+2*d}, v{T+2*d+1}")
        k.e(f"""s_nop 1
v_permlane32_swap_b32 v{T+16}, v{T+18}
v_permlane32_swap_b32 v{T+17}, v{T+19}
buffer_store_dwordx4 {vr(T+16,4)}, v3, s[8:11], s27 offen offset:{(i&3)*1024}""")
        if i == 3:
            k.e("s_add_u32 s27, s27, 4096")
    k.lab("end")
    k.e("s_endpgm")
    return k, GRID, 256, NB*STG, (256 + 112, 256)

def gen_k5(D=10):
    k = Kern("k5_kernel")
    GRID = 256
    k.e(f"s_cmp_ge_u32 s2, {GRID}\ns_cbranch_scc1 {k.ref('end')}")
    k.e("s_load_dwordx2 s[16:17], s[0:1], 88\ns_load_dwordx2 s[18:19], s[0:1], 104")
    k.e("""v_lshrrev_b32 v1, 6, v0
v_and_b32 v2, 63, v0
s_and_b32 s20, s2, 7
s_bfe_u32 s21, s2, 0x20003
s_lshl_b32 s21, s21, 3
s_add_u32 s20, s20, s21
s_lshr_b32 s21, s2, 5
v_readfirstlane_b32 s3, v1
v_lshlrev_b32 v3, 4, v2
s_waitcnt lgkmcnt(0)""")
    k.srd(4, 16, 2048*512*2)
    k.srd(8, 18, WS_SIZE)
    k.e(f"""s_lshr_b32 s22, s3, 1
s_and_b32 s23, s3, 1
s_lshl_b32 s24, s20, 1
s_add_u32 s24, s24, s23
s_lshl_b32 s24, s24, 15
s_lshl_b32 s25, s21, 6
s_lshl_b32 s26, s22, 5
s_add_u32 s25, s25, s26
v_and_b32 v4, 31, v2
v_lshlrev_b32 v4, 10, v4
v_lshrrev_b32 v5, 5, v2
v_lshl_add_u32 v6, v5, 3, v4
s_lshl_b32 s26, s25, 1
s_add_u32 s24, s24, s26
s_add_u32 s27, s24, {X1}
v_lshlrev_b32 v7, 4, v5
s_lshl_b32 s26, s25, 2
s_add_u32 s26, s26, {MODF + 2560*4}""")
    for q in range(4):
        k.e(f"buffer_load_dwordx2 {vr(8+2*q,2)}, v6, s[8:11], s27 offen offset:{16*q}")
    for q in range(4):
        k.e(f"buffer_load_dwordx4 {vr(240+4*q,4)}, v7, s[8:11], s26 offen offset:{32*q}")
    k.e(f"""s_mul_i32 s28, s3, {28*1024}
s_mul_i32 s30, s21, {2*114688}
s_add_u32 s30, s30, s28
s_add_u32 s30, s30, {WD}
s_add_u32 s31, s30, 114688
s_mul_i32 s32, s20, {2*114688}
s_add_u32 s32, s32, s28
s_add_u32 s32, s32, {HHF}
s_add_u32 s33, s32, 114688""")
    FR = 80; ACC = 16
    def loads(kap):
        b = FR + 16 * (kap % D)
        for j in range(4):
            k.e(f"buffer_load_dwordx4 {vr(b+4*j,4)}, v3, s[8:11], s{30+j} offen offset:{(kap&3)*1024}")
        if (kap & 3) == 3:
            for j in range(4):
                k.e(f"s_add_u32 s{30+j}, s{30+j}, 4096")
    for kap in range(D): loads(kap)
    NK = 28
    for kap in range(NK):
        issued = min(NK, kap + D)
        k.e(f"s_waitcnt vmcnt({4*(issued - kap - 1)})")
        b = FR + 16 * (kap % D)
        for a in range(2):
            for bb in range(2):
                t = a*2 + bb
                c = "0" if kap == 0 else vr(ACC+16*t, 16)
                k.e(f"v_mfma_f32_32x32x16_bf16 {vr(ACC+16*t,16)}, {vr(b+4*a,4)}, {vr(b+8+4*bb,4)}, {c}")
        if kap + D < NK:
            loads(kap + D)
    k.e("s_nop 15\ns_nop 3")
    k.e("s_lshl_b32 s34, s3, 14\nv_add_u32 v4, s34, v3")
    for t in range(4):
        k.e(f"s_cmp_eq_u32 s3, {t}\ns_cbranch_scc1 {k.ref('skipw%d' % t)}")
        for c in range(4):
            k.e(f"ds_write_b128 v4, {vr(ACC+16*t+4*c,4)} offset:{t*4096 + c*1024}")
        k.lab("skipw%d" % t)
    k.e("s_waitcnt lgkmcnt(0)\ns_barrier")
    R = 80
    for t in range(4):
        k.e(f"s_cmp_lg_u32 s3, {t}\ns_cbranch_scc1 {k.ref('skipm%d' % t)}")
        for r in range(16):
            k.e(f"v_mov_b32 v{R+r}, v{ACC+16*t+r}")
        k.lab("skipm%d" % t)
    k.e("s_lshl_b32 s34, s3, 12\nv_add_u32 v4, s34, v3")
    for ow in range(4):
        for c in range(4):
            k.e(f"ds_read_b128 {vr(96+16*ow+4*c,4)}, v4 offset:{ow*16384 + c*1024}")
    k.e("s_waitcnt lgkmcnt(0)")
    for ow in range(4):
        k.e(f"s_cmp_eq_u32 s3, {ow}\ns_cbranch_scc1 {k.ref('skipa%d' % ow)}")
        for r in range(16):
            k.e(f"v_add_f32 v{R+r}, v{R+r}, v{96+16*ow+r}")
        k.lab("skipa%d" % ow)
    for i in range(0, 16, 2):
        round_bf16_pair(k, R+i, R+i+1, 4)
    for i in range(16):
        k.e(f"v_mul_f32 v{R+i}, v{R+i}, v{240+i}")
    for i in range(0, 16, 2):
        round_bf16_pair(k, R+i, R+i+1, 4)
    for d in range(8):
        k.e(f"v_lshlrev_b32 v{96+2*d}, 16, v{8+d}\nv_and_b32 v{97+2*d}, 0xffff0000, v{8+d}")
    for i in range(16):
        k.e(f"v_add_f32 v{R+i}, v{R+i}, v{96+i}")
    for d in range(8):
        k.e(f"v_cvt_pk_bf16_f32 v{112+d}, v{R+2*d}, v{R+2*d+1}")
    k.e("""s_nop 1
v_permlane32_swap_b32 v112, v114
v_permlane32_swap_b32 v113, v115
v_permlane32_swap_b32 v116, v118
v_permlane32_swap_b32 v117, v119
v_and_b32 v4, 31, v2
v_lshlrev_b32 v4, 10, v4
v_lshl_add_u32 v4, v5, 4, v4
buffer_store_dwordx4 v[112:115], v4, s[4:7], s24 offen
buffer_store_dwordx4 v[116:119], v4, s[4:7], s24 offen offset:32""")
    k.lab("end")
    k.e("s_endpgm")
    return k, GRID, 256, 65536, 256
```

```python
from gen import *

def dpp_reduce(k, regs):
    seq = ["quad_perm:[1,0,3,2] row_mask:0xf bank_mask:0xf",
           "quad_perm:[2,3,0,1] row_mask:0xf bank_mask:0xf",
           "row_half_mirror row_mask:0xf bank_mask:0xf",
           "row_mirror row_mask:0xf bank_mask:0xf",
           "row_bcast:15 row_mask:0xa bank_mask:0xf",
           "row_bcast:31 row_mask:0xc bank_mask:0xf"]
    for sq in seq:
        for r in regs:
            k.e(f"v_add_f32_dpp v{r}, v{r}, v{r} {sq}")
        if len(regs) < 3:
            k.e("s_nop 1")

def round_bf16_pair(k, a, b, tmp):
    k.e(f"v_cvt_pk_bf16_f32 v{tmp}, v{a}, v{b}\nv_lshlrev_b32 v{a}, 16, v{tmp}\nv_and_b32 v{b}, 0xffff0000, v{tmp}")

def gen_k1():
    k = Kern("k1_kernel")
    GRID = 320
    k.e(f"s_cmp_ge_u32 s2, {GRID}\ns_cbranch_scc1 {k.ref('end')}")
    k.e("s_load_dwordx2 s[16:17], s[0:1], 0\ns_load_dwordx2 s[18:19], s[0:1], 104")
    k.e("""v_lshrrev_b32 v1, 6, v0
v_and_b32 v2, 63, v0
s_mov_b32 s20, 0x33333334
s_mul_hi_u32 s21, s2, s20
s_mul_i32 s22, s21, 5
s_sub_u32 s22, s2, s22
v_readfirstlane_b32 s3, v1
s_waitcnt lgkmcnt(0)""")
    k.srd(4, 16, 2048*512*2)
    k.srd(8, 18, WS_SIZE)
    k.e("""v_lshlrev_b32 v3, 4, v2
s_lshl_b32 s23, s21, 5
s_lshl_b32 s24, s3, 3
s_add_u32 s23, s23, s24
s_lshl_b32 s23, s23, 10""")
    for t in range(8):
        k.e(f"buffer_load_dwordx4 v[{16+4*t}:{19+4*t}], v3, s[4:7], s23 offen offset:{(t&3)*1024}")
        if t == 3:
            k.e("s_add_u32 s23, s23, 4096")
    k.e("v_lshlrev_b32 v4, 5, v2")
    for p in range(8):
        k.e(f"s_mov_b32 s25, {MODP + p*12288}")
        b = 128 + 16*p
        k.e(f"""buffer_load_dwordx4 v[{b}:{b+3}], v4, s[8:11], s25 offen
buffer_load_dwordx4 v[{b+4}:{b+7}], v4, s[8:11], s25 offen offset:16
buffer_load_dwordx4 v[{b+8}:{b+11}], v4, s[8:11], s25 offen offset:2048
buffer_load_dwordx4 v[{b+12}:{b+15}], v4, s[8:11], s25 offen offset:2064""")
    k.e("""s_lshl_b32 s26, s22, 2
s_add_u32 s26, s26, s3
s_lshl_b32 s27, s26, 15""")
    k.e(f"s_add_u32 s27, s27, {WQKV}")
    k.e("s_waitcnt vmcnt(32)")
    X = 48
    for t in range(8):
        for d in range(4):
            k.e(f"v_lshlrev_b32 v{X+8*t+2*d}, 16, v{16+4*t+d}\nv_and_b32 v{X+8*t+2*d+1}, 0xffff0000, v{16+4*t+d}")
    S = 112
    for t in range(8):
        b = X + 8*t
        k.e(f"v_add_f32 v{S+t}, v{b}, v{b+1}")
    for i in range(2, 8):
        for t in range(8):
            k.e(f"v_add_f32 v{S+t}, v{S+t}, v{X+8*t+i}")
    dpp_reduce(k, [S+t for t in range(8)])
    k.e("s_mov_b32 s28, 0x3b000000")
    for t in range(8):
        k.e(f"v_mul_f32 v{S+t}, s28, v{S+t}")
    k.e("s_nop 0")
    for t in range(8):
        k.e(f"v_readlane_b32 s{32+t}, v{S+t}, 63")
    k.e("s_nop 1")
    for t in range(8):
        for i in range(8):
            k.e(f"v_subrev_f32 v{X+8*t+i}, s{32+t}, v{X+8*t+i}")
    for t in range(8):
        k.e(f"v_mul_f32 v{S+t}, v{X+8*t}, v{X+8*t}")
    for i in range(1, 8):
        for t in range(8):
            k.e(f"v_fmac_f32 v{S+t}, v{X+8*t+i}, v{X+8*t+i}")
    dpp_reduce(k, [S+t for t in range(8)])
    k.e("v_mov_b32 v5, 0x3727c5ac")
    for t in range(8):
        k.e(f"v_fma_f32 v{S+t}, v{S+t}, s28, v5")
    for t in range(8):
        k.e(f"v_rsq_f32 v{S+t}, v{S+t}")
    k.e("s_nop 0")
    for t in range(8):
        k.e(f"v_readlane_b32 s{40+t}, v{S+t}, 63")
    k.e("s_waitcnt vmcnt(0)")
    for p in range(1, 8):
        for i in range(16):
            k.e(f"v_add_f32 v{128+i}, v{128+i}, v{128+16*p+i}")
    def wf(s):
        return 144 + 4*s if s < 28 else 16 + 4*(s-28)
    k.e(f"s_cmp_ge_u32 s26, 17\ns_cbranch_scc1 {k.ref('now')}")
    for s in range(32):
        k.e(f"buffer_load_dwordx4 {vr(wf(s),4)}, v3, s[8:11], s27 offen offset:{(s&3)*1024}")
        if (s & 3) == 3:
            k.e("s_add_u32 s27, s27, 4096")
    k.lab("now")
    for i in range(0, 16, 2):
        round_bf16_pair(k, 128+i, 129+i, 5)
    for i in range(8):
        k.e(f"v_add_f32 v{136+i}, 1.0, v{136+i}")
    for i in range(0, 8, 2):
        round_bf16_pair(k, 136+i, 137+i, 5)
    k.e("""v_lshrrev_b32 v6, 1, v2
v_mul_u32_u24 v6, 1056, v6
v_and_b32 v7, 1, v2
v_mul_u32_u24 v7, 528, v7
v_add_u32 v6, v6, v7
s_lshl_b32 s24, s3, 7
v_add_u32 v6, s24, v6""")
    for t in range(8):
        for i in range(8):
            k.e(f"v_mul_f32 v{X+8*t+i}, s{40+t}, v{X+8*t+i}")
        for i in range(8):
            k.e(f"v_fma_f32 v{X+8*t+i}, v{X+8*t+i}, v{136+i}, v{128+i}")
        for d in range(4):
            k.e(f"v_cvt_pk_bf16_f32 v{32+4*(t&1)+d}, v{X+8*t+2*d}, v{X+8*t+2*d+1}")
        k.e(f"ds_write_b128 v6, {vr(32+4*(t&1),4)} offset:{16*t}")
    k.e(f"""s_cmp_lg_u32 s22, 4
s_cbranch_scc1 {k.ref('nomf')}
s_cmp_lg_u32 s3, 1
s_cbranch_scc1 {k.ref('nomf')}
s_cmp_ge_u32 s21, 12
s_cbranch_scc1 {k.ref('nomf')}
s_lshl_b32 s29, s21, 10""")
    for p in range(8):
        k.e(f"s_add_u32 s30, s29, {MODP + p*12288}\nbuffer_load_dwordx4 {vr(48+4*p,4)}, v3, s[8:11], s30 offen")
    k.e("s_waitcnt vmcnt(0)")
    for p in range(1, 8):
        for i in range(4):
            k.e(f"v_add_f32 v{48+i}, v{48+i}, v{48+4*p+i}")
    round_bf16_pair(k, 48, 49, 5); round_bf16_pair(k, 50, 51, 5)
    k.e(f"s_add_u32 s30, s29, {MODF}\nbuffer_store_dwordx4 v[48:51], v3, s[8:11], s30 offen")
    k.lab("nomf")
    k.e("s_waitcnt lgkmcnt(0)\ns_barrier")
    k.e(f"s_cmp_ge_u32 s26, 17\ns_cbranch_scc1 {k.ref('end')}")
    k.e("""v_lshrrev_b32 v6, 5, v2
v_mul_u32_u24 v6, 528, v6
v_and_b32 v7, 31, v2
v_lshl_add_u32 v6, v7, 4, v6""")
    HB = 48
    ACC = 112
    def rd(s):
        k.e(f"ds_read_b128 {vr(HB+4*(s&15),4)}, v6 offset:{s*1056}")
    for s in range(16): rd(s)
    k.e("s_waitcnt vmcnt(0)")
    for s in range(32):
        outstanding_after = min(15, 31 - s) if s < 16 else 31 - s
        issued = min(32, 16 + s)
        k.e(f"s_waitcnt lgkmcnt({min(15, issued - (s+1))})")
        c = "0" if s == 0 else vr(ACC, 16)
        k.e(f"v_mfma_f32_32x32x16_bf16 {vr(ACC,16)}, {vr(wf(s),4)}, {vr(HB+4*(s&15),4)}, {c}")
        if s + 16 < 32:
            rd(s + 16)
    k.e("s_nop 15\ns_nop 3")
    k.e(f"s_cmp_eq_u32 s26, 16\ns_cbranch_scc1 {k.ref('kv')}")
    k.e("s_mov_b32 s28, 0x3eb8aa3b")
    for r in range(16):
        k.e(f"v_mul_f32 v{ACC+r}, s28, v{ACC+r}")
    for d in range(8):
        k.e(f"v_cvt_pk_bf16_f32 v{32+d}, v{ACC+2*d}, v{ACC+2*d+1}")
    k.e("""s_nop 1
v_permlane32_swap_b32 v32, v34
v_permlane32_swap_b32 v33, v35
v_permlane32_swap_b32 v36, v38
v_permlane32_swap_b32 v37, v39""")
    k.e(f"""v_and_b32 v7, 31, v2
v_lshlrev_b32 v7, 10, v7
v_lshrrev_b32 v8, 5, v2
v_lshl_add_u32 v7, v8, 4, v7
s_lshl_b32 s29, s21, 15
s_lshl_b32 s30, s26, 6
s_add_u32 s29, s29, s30
s_add_u32 s29, s29, {QB}
buffer_store_dwordx4 v[32:35], v7, s[8:11], s29 offen
buffer_store_dwordx4 v[36:39], v7, s[8:11], s29 offen offset:32
s_endpgm""")
    k.lab("kv")
    for d in range(8):
        k.e(f"v_cvt_pk_bf16_f32 v{32+d}, v{ACC+2*d}, v{ACC+2*d+1}")
    k.e(f"""s_nop 1
v_permlane32_swap_b32 v32, v34
v_permlane32_swap_b32 v33, v35
s_lshl_b32 s29, s21, 10
s_add_u32 s30, s29, {KF}
buffer_store_dwordx4 v[32:35], v3, s[8:11], s30 offen""")
    k.e(f"""v_bfe_u32 v7, v2, 4, 1
v_lshlrev_b32 v7, 9, v7
v_bfe_u32 v8, v2, 2, 1
v_lshl_add_u32 v7, v8, 8, v7
v_and_b32 v8, 3, v2
v_lshl_add_u32 v7, v8, 1, v7
v_bfe_u32 v8, v2, 3, 1
v_lshl_add_u32 v7, v8, 3, v7
v_lshrrev_b32 v8, 5, v2
v_lshl_add_u32 v7, v8, 6, v7
s_add_u32 s30, s29, {VF}""")
    for r in range(8):
        dv = (r & 3) + 8 * (r >> 2)
        reg = 36 + (r >> 1)
        op = "buffer_store_short" if (r & 1) == 0 else "buffer_store_short_d16_hi"
        k.e(f"{op} v{reg}, v7, s[8:11], s30 offen offset:{dv*16}")
    k.lab("end")
    k.e("s_endpgm")
    return k, GRID, 256, 33792, 256

def more():
    import gen_k2, gen_k45
    return [gen_k1(), gen_k2.gen_k2(), gen_k45.gen_k4(), gen_k45.gen_k5()]
```

```python
import sys

MODP  = 0x000000
MODF  = 0x020000
WQKV  = 0x100000
WO    = 0x200000
WGU   = 0x300000
WD    = 0x700000
QB    = 0x900000
KF    = 0xB00000
VF    = 0xB10000
X1    = 0xC00000
H2F   = 0xE00000
HHF   = 0x1000000
WS_SIZE = 0x2000000

A_X, A_WQ, A_WK, A_WV, A_WO, B_X, B_WG, B_WU, B_WD, A_C, A_WMOD, A_OUT, A_DBG, A_WS = [8*i for i in range(14)]

class Kern:
    def __init__(self, name):
        self.name = name
        self.L = []
        self.uid = 0
    def e(self, s):
        for ln in s.strip('\n').split('\n'):
            self.L.append("    " + ln.strip())
    def c(self, s):
        self.L.append("    ; " + s)
    def lab(self, l):
        self.L.append(f"{self.name}_{l}:")
    def ref(self, l):
        return f"{self.name}_{l}"
    def srd(self, s, p, size):
        self.e(f"s_mov_b32 s{s}, s{p}\ns_and_b32 s{s+1}, s{p+1}, 0xffff\ns_mov_b32 s{s+2}, {size}\ns_mov_b32 s{s+3}, 0x00020000")
    def text(self):
        h = f".globl {self.name}\n.p2align 8\n.type {self.name},@function\n{self.name}:\n"
        return h + "\n".join(self.L) + "\n"
    def desc(self, nv, ns=102, acc=None):
        if isinstance(nv, tuple): nv, acc = nv
        if acc is None: acc = (nv + 3) // 4 * 4
        return f""".p2align 6
.amdhsa_kernel {self.name}
  .amdhsa_next_free_vgpr {nv}
  .amdhsa_next_free_sgpr {ns}
  .amdhsa_accum_offset {acc}
  .amdhsa_group_segment_fixed_size 0
  .amdhsa_kernarg_size 112
  .amdhsa_user_sgpr_count 2
  .amdhsa_user_sgpr_kernarg_segment_ptr 1
  .amdhsa_system_sgpr_workgroup_id_x 1
.end_amdhsa_kernel
"""

def vr(a, n):
    return f"v[{a}:{a+n-1}]"

def gen_k0():
    k = Kern("k0_kernel")
    NMOD = 192
    ranges = [("wq", 32), ("wo", 32), ("wg", 112), ("wu", 112), ("wd", 112), ("kv", 2)]
    total = NMOD + sum(n for _, n in ranges)
    k.e(f"s_cmp_ge_u32 s2, {total}\ns_cbranch_scc1 {k.ref('end')}")
    k.e("s_load_dwordx16 s[16:31], s[0:1], 0\ns_load_dwordx8 s[32:39], s[0:1], 64\ns_load_dwordx4 s[40:43], s[0:1], 96")
    k.e("v_lshrrev_b32 v1, 6, v0\nv_and_b32 v2, 63, v0")
    k.e("s_nop 0\nv_readfirstlane_b32 s3, v1")
    k.e("s_waitcnt lgkmcnt(0)")
    k.srd(8, 42, WS_SIZE)
    k.e(f"s_cmp_ge_u32 s2, {NMOD}\ns_cbranch_scc1 {k.ref('pack')}")
    k.srd(4, 36, 512*3072*2)
    k.srd(12, 34, 1024)
    k.e("""s_and_b32 s44, s2, 7
s_lshr_b32 s45, s2, 3
v_and_b32 v3, 15, v0
v_lshrrev_b32 v4, 4, v0
s_lshl_b32 s46, s44, 6
v_lshl_add_u32 v5, v4, 2, s46""")
    k.e("""v_lshlrev_b32 v6, 1, v5
buffer_load_dwordx2 v[8:9], v6, s[12:15], 0 offen
s_mov_b32 s47, 6144
v_mul_lo_u32 v7, v5, s47
s_lshl_b32 s48, s45, 8
v_lshl_add_u32 v10, v3, 4, s48
v_add_u32 v7, v7, v10
s_mov_b32 s50, 6144
s_mov_b32 s51, 12288
s_mov_b32 s52, 18432
buffer_load_dwordx4 v[16:19], v7, s[4:7], 0 offen
buffer_load_dwordx4 v[20:23], v7, s[4:7], s50 offen
buffer_load_dwordx4 v[24:27], v7, s[4:7], s51 offen
buffer_load_dwordx4 v[28:31], v7, s[4:7], s52 offen
s_waitcnt vmcnt(4)""")
    k.e("""v_lshlrev_b32 v32, 16, v8
v_and_b32 v33, 0xffff0000, v8
v_lshlrev_b32 v34, 16, v9
v_and_b32 v35, 0xffff0000, v9
s_mov_b32 s53, 0xbfb8aa3b""")
    for i in range(4):
        k.e(f"v_mul_f32 v{36+i}, s53, v{32+i}")
    for i in range(4):
        k.e(f"v_exp_f32 v{36+i}, v{36+i}")
    k.e("s_nop 0")
    for i in range(4):
        k.e(f"v_add_f32 v{36+i}, 1.0, v{36+i}")
    for i in range(4):
        k.e(f"v_rcp_f32 v{36+i}, v{36+i}")
    k.e("s_nop 0")
    for i in range(4):
        k.e(f"v_mul_f32 v{32+i}, v{32+i}, v{36+i}")
    k.e("""v_cvt_pk_bf16_f32 v36, v32, v33
v_cvt_pk_bf16_f32 v37, v34, v35
v_lshlrev_b32 v32, 16, v36
v_and_b32 v33, 0xffff0000, v36
v_lshlrev_b32 v34, 16, v37
v_and_b32 v35, 0xffff0000, v37
s_waitcnt vmcnt(0)""")
    for i in range(4):
        for d in range(4):
            src = 16 + 4*i + d
            k.e(f"v_lshlrev_b32 v48, 16, v{src}\nv_and_b32 v49, 0xffff0000, v{src}")
            if i == 0:
                k.e(f"v_mul_f32 v{40+2*d}, v{32+i}, v48\nv_mul_f32 v{41+2*d}, v{32+i}, v49")
            else:
                k.e(f"v_fmac_f32 v{40+2*d}, v{32+i}, v48\nv_fmac_f32 v{41+2*d}, v{32+i}, v49")
    k.e("""v_lshlrev_b32 v50, 9, v4
v_lshl_add_u32 v50, v3, 5, v50
ds_write_b128 v50, v[40:43]
ds_write_b128 v50, v[44:47] offset:16
s_waitcnt lgkmcnt(0)
s_barrier
v_cmp_gt_u32 vcc, 128, v0
s_and_saveexec_b64 s[54:55], vcc""")
    k.e(f"s_cbranch_execz {k.ref('end')}")
    k.e("v_lshlrev_b32 v51, 2, v0")
    for i in range(16):
        k.e(f"ds_read_b32 v{56+i}, v51 offset:{512*i}")
    k.e("s_waitcnt lgkmcnt(0)")
    for i in range(1, 16):
        k.e(f"v_add_f32 v56, v56, v{56+i}")
    k.e(f"""s_mul_i32 s56, s44, 12288
s_lshl_b32 s57, s45, 9
s_add_u32 s56, s56, s57
s_add_u32 s56, s56, {MODP}
buffer_store_dword v56, v51, s[8:11], s56 offen
s_endpgm""")
    k.lab("pack")
    start = NMOD
    cfg = {
        "wq": (18, 512, 512, WQKV, 5, 32768, 4, 0, 32),
        "wo": (24, 512, 512, WO, 4, 16384, 5, 0, 16),
        "wg": (28, 512, 1792, WGU, 4, 32768, 4, 0, 32),
        "wu": (30, 512, 1792, WGU, 4, 32768, 4, 16, 32),
        "wd": (32, 1792, 512, WD, 5, 114688, 4, 0, 32),
        "wk": (20, 512, 16, WQKV + 16*32768, 4, 32768, 4, 0, 32),
        "wv": (22, 512, 16, WQKV + 16*32768, 4, 32768, 4, 16, 32),
    }
    def pack_body(nm):
        p, K, N, base, lc, tstride, lk, ioff, R = cfg[nm]
        rowb = N * 2
        k.srd(4, p, K * N * 2)
        k.e(f"s_mov_b32 s60, {8*rowb}\nv_mul_lo_u32 v12, v11, s60\nv_lshl_add_u32 v12, v10, 1, v12")
        for j in range(8):
            k.e(f"s_mov_b32 s{61+j}, {j*rowb}")
        for j in range(8):
            k.e(f"buffer_load_dwordx2 v[{16+2*j}:{17+2*j}], v12, s[4:7], s{61+j} offen")
        k.e(f"""v_lshrrev_b32 v13, {lc}, v10
s_mov_b32 s60, {tstride}
v_mul_lo_u32 v13, v13, s60
v_lshrrev_b32 v14, {lk-3}, v11
v_lshl_add_u32 v13, v14, 10, v13
v_and_b32 v14, {(1 << (lk-3)) - 1}, v11
v_mul_u32_u24 v14, {R}, v14
v_and_b32 v15, {(1 << lc) - 1}, v10
v_add_u32 v14, v14, v15
v_add_u32 v14, {ioff}, v14
v_lshl_add_u32 v13, v14, 4, v13
v_add_u32 v13, {base}, v13
s_mov_b32 s70, 0x05040100
s_mov_b32 s71, 0x07060302
s_waitcnt vmcnt(0)""")
        for c in range(4):
            d = c >> 1
            sel = 70 + (c & 1)
            for m in range(4):
                k.e(f"v_perm_b32 v{32+4*c+m}, v{16+2*(2*m+1)+d}, v{16+2*(2*m)+d}, s{sel}")
        for c in range(4):
            k.e(f"buffer_store_dwordx4 v[{32+4*c}:{35+4*c}], v13, s[8:11], 0 offen offset:{16*c}")
        k.e("s_endpgm")
    for nm, n in ranges:
        nxt = start + n
        k.e(f"s_cmp_ge_u32 s2, {nxt}\ns_cbranch_scc1 {k.ref('p_after_'+nm)}")
        k.e(f"s_sub_u32 s44, s2, {start}\ns_lshl_b32 s44, s44, 2\ns_add_u32 s44, s44, s3")
        if nm in ("wq", "wo", "wg", "wu"):
            k.e("""s_lshr_b32 s45, s44, 6
s_and_b32 s46, s44, 63
s_lshl_b32 s45, s45, 8
v_lshl_add_u32 v10, v2, 2, s45
v_mov_b32 v11, s46""")
            pack_body(nm)
        elif nm == "wd":
            k.e("""s_and_b32 s45, s44, 1
s_lshr_b32 s46, s44, 1
s_lshl_b32 s45, s45, 8
v_lshl_add_u32 v10, v2, 2, s45
v_mov_b32 v11, s46""")
            pack_body(nm)
        else:
            k.e("""s_and_b32 s46, s44, 3
s_lshl_b32 s46, s46, 4
v_and_b32 v10, 3, v2
v_lshlrev_b32 v10, 2, v10
v_lshrrev_b32 v11, 2, v2
v_add_u32 v11, s46, v11
s_cmp_ge_u32 s44, 4""")
            k.e(f"s_cbranch_scc1 {k.ref('p_wv')}")
            pack_body("wk")
            k.lab("p_wv")
            pack_body("wv")
        k.lab("p_after_" + nm)
        start = nxt
    k.lab("end")
    k.e("s_endpgm")
    return k, total, 256, 8192, 72

KERNELS = []
def build(which=None):
    ks = []
    ks.append(gen_k0())
    import gen_rest
    ks += gen_rest.more()
    if which is not None:
        ks = ks[:which]
    hdr = open('adaLN_cond__grouped_kv_mqa__glu_gated_reglu__prompt.s.ref').read().split('; Override')[0]
    s = hdr
    for k, grid, blk, lds, nv in ks:
        s += f"; @launch kernel={k.name} grid=({grid},1,1) block=({blk},1,1) lds={lds}\n"
    s += '.amdgcn_target "amdgcn-amd-amdhsa--gfx950"\n.text\n'
    for k, *_ in ks:
        s += k.text()
    s += '.section .rodata,"a"\n'
    for k, grid, blk, lds, nv in ks:
        s += k.desc(nv)
    return s

if __name__ == "__main__":
    out = sys.argv[1] if len(sys.argv) > 1 else "adaLN_cond__grouped_kv_mqa__glu_gated_reglu__prompt.s"
    which = int(sys.argv[2]) if len(sys.argv) > 2 else None
    open(out, "w").write(build(which))
    print("wrote", out)
```

```python
from gen import *
from gen_rest import dpp_reduce, round_bf16_pair

def gen_k2(NINIT=4):
    k = Kern("k2_kernel")
    GRID = 256
    QF = 4; QF1 = 8; CN = 16; SA = 32; SB = 48; P = 64; O = 72; OC = 88
    vKA, vVA = 97, 98
    KB = 100; VB = 104; ACC = 112; WOF = 128
    OBUF = 131072
    XBUF = OBUF + 4352
    MBUF = XBUF + 4 * 2560
    XIN = MBUF + 6144
    CNT = XIN + 8192
    LDS = CNT + 64 + 256
    assert LDS <= 163840
    L = O + 8
    k.e(f"s_cmp_ge_u32 s2, {GRID}\ns_cbranch_scc1 {k.ref('end')}")
    k.e("s_load_dwordx2 s[16:17], s[0:1], 0\ns_load_dwordx2 s[18:19], s[0:1], 104\ns_load_dwordx4 s[52:55], s[0:1], 48\ns_load_dwordx2 s[56:57], s[0:1], 64")
    k.e("""v_lshrrev_b32 v13, 6, v0
v_and_b32 v2, 63, v0
s_nop 0
v_readfirstlane_b32 s3, v13
v_lshlrev_b32 v3, 4, v2
s_waitcnt lgkmcnt(0)""")
    k.srd(4, 16, 2048*512*2)
    k.srd(8, 18, WS_SIZE)
    k.srd(60, 52, 512*1792*2)
    k.srd(64, 54, 512*1792*2)
    k.srd(12, 56, 1792*512*2)
    k.e("s_and_b32 s45, s3, 3\ns_lshr_b32 s46, s3, 2")
    k.e(f"""s_lshl_b32 s22, s2, 3
s_lshl_b32 s23, s45, 1
s_add_u32 s22, s22, s23
s_lshl_b32 s23, s22, 10
s_add_u32 s23, s23, {QB}
v_bfe_u32 v13, v2, 4, 1
v_lshlrev_b32 v13, 10, v13
v_and_b32 v14, 15, v2
v_lshl_add_u32 v13, v14, 5, v13
v_lshrrev_b32 v15, 5, v2
v_lshl_add_u32 v13, v15, 4, v13
buffer_load_dwordx4 {vr(QF,4)}, v13, s[8:11], s23 offen
buffer_load_dwordx4 {vr(QF1,4)}, v13, s[8:11], s23 offen offset:512""")
    k.e(f"""s_lshr_b32 s20, s3, 1
s_lshl_b32 s20, s20, 15
s_and_b32 s21, s3, 1
s_lshl_b32 s21, s21, 12
s_add_u32 s20, s20, s21
s_add_u32 s21, s20, {KF}
s_mov_b32 m0, s20
s_nop 0""")
    for j in range(4):
        k.e(f"buffer_load_dwordx4 v3, s[8:11], s21 offen offset:{j*1024} lds")
    k.e(f"""s_lshr_b32 s20, s3, 1
s_lshl_b32 s20, s20, 15
s_and_b32 s21, s3, 1
s_mul_i32 s21, s21, 12288
s_add_u32 s20, s20, s21
s_add_u32 s20, s20, 8192
s_add_u32 s21, s20, {KF}""")
    for i in range(3):
        k.e("s_mov_b32 m0, s20\ns_nop 0")
        for j in range(4):
            k.e(f"buffer_load_dwordx4 v3, s[8:11], s21 offen offset:{j*1024} lds")
        if i < 2:
            k.e("s_add_u32 s20, s20, 4096\ns_add_u32 s21, s21, 4096")
    k.e(f"""s_lshl_b32 s20, s3, 10
s_add_u32 s21, s20, {XIN}
s_mov_b32 m0, s21
s_lshl_b32 s37, s2, 13
s_add_u32 s21, s37, s20
buffer_load_dwordx4 v3, s[4:7], s21 offen lds
s_cmp_ge_u32 s3, 6
s_cbranch_scc1 {k.ref('nomod')}
s_add_u32 s21, s20, {MBUF}
s_mov_b32 m0, s21
s_add_u32 s21, s20, {MODF + 4096}
buffer_load_dwordx4 v3, s[8:11], s21 offen lds
s_branch {k.ref('moddone')}""")
    k.lab("nomod")
    k.e(f"""s_add_u32 s21, s20, {XIN}
s_mov_b32 m0, s21
s_add_u32 s21, s37, s20
buffer_load_dwordx4 v3, s[4:7], s21 offen lds""")
    k.lab("moddone")
    k.e(f"""v_lshl_add_u32 v14, v15, 4, v14
v_lshlrev_b32 v99, 4, v14
s_mov_b32 s30, 0x0000ffff
s_mov_b32 s31, 0x0000ffff
s_mov_b32 s27, 0x71800000
s_mov_b32 s28, 0x4b800000
s_mov_b32 s47, 0
v_lshlrev_b32 v12, 2, v2
v_add_u32 v12, {CNT}, v12
v_mov_b32 v13, 2
s_mov_b64 exec, 0xff
ds_write_b32 v12, v13
s_mov_b64 exec, -1
s_lshl_b32 s20, s45, 2
s_add_u32 s20, s20, {CNT}
v_mov_b32 v12, s20
s_waitcnt lgkmcnt(0)""")
    for i in range(8):
        k.e(f"v_mov_b32 v{VB+i}, 0x3f803f80")
    k.ts(0)
    k.e("s_waitcnt vmcnt(14)\ns_barrier")
    k.ts(1)
    k.lab("round")
    k.e(f"""s_lshl_b32 s20, s46, 15
v_add_u32 v{vKA}, s20, v3
s_add_u32 s21, s20, 65536
v_add_u32 v{vVA}, s21, v99
s_mov_b32 s24, 0
s_mov_b32 s26, 0xff7fffff
s_lshl_b32 s32, s3, 16
s_lshl_b32 s33, s47, 13
s_add_u32 s32, s32, s33
s_add_u32 s32, s32, {WO}
s_add_u32 s33, s32, 4096""")
    for i in range(16):
        k.e(f"v_mov_b32 v{CN+i}, 0")
    for i in range(9):
        k.e(f"v_mov_b32 v{O+i}, 0\nv_mov_b32 v{OC+i}, 0")
    k.e(f"""s_lshl_b32 s20, s47, 4
s_lshl_b32 s21, s45, 2
s_add_u32 s20, s20, s21
s_add_u32 s20, s20, {CNT}
v_mov_b32 v12, s20
v_mov_b32 v13, 1
s_mov_b64 exec, 1
ds_add_rtn_u32 v0, v12, v13
s_mov_b64 exec, -1""")
    k.e(f"s_mov_b32 s48, {NINIT}\ns_branch {k.ref('slow')}")
    def rdK(t):
        k.e(f"ds_read_b128 {vr(KB,4)}, v{vKA} offset:{t*1024}")
    def rdV(t):
        k.e(f"""s_mov_b64 exec, s[30:31]
ds_read_b128 {vr(VB,4)}, v{vVA} offset:{t*1024}
ds_read_b128 {vr(VB+4,4)}, v{vVA} offset:{t*1024+512}
s_mov_b64 exec, -1""")
    def mfS(t):
        S = SA if (t & 1) == 0 else SB
        k.e(f"v_mfma_f32_32x32x16_bf16 {vr(S,16)}, {vr(KB,4)}, {vr(QF,4)}, {vr(CN,16)}")
    def q4(S, q):
        for i in range(4):
            k.e(f"v_exp_f32 v{S+4*q+i}, v{S+4*q+i}")
        for d in range(2):
            a = S + 4*q + 2*d
            k.e(f"v_cvt_pk_bf16_f32 v{P+2*q+d}, v{a}, v{a+1}")
    def woload(c, t):
        if os.environ.get('NOWO'): return
        k.e(f"buffer_load_dwordx4 {vr(WOF+4*(8*c+t),4)}, v3, s[8:11], s{32 + (t>>2)} offen offset:{(t&3)*1024}")
    for c in range(5):
        k.lab(f"chunk{c}")
        k.e(f"s_mov_b32 s25, 0\ns_mov_b32 s24, {c}")
        k.e(f"""v_mov_b32 v13, 1
s_mov_b64 exec, 1
ds_add_rtn_u32 v0, v12, v13
s_mov_b64 exec, -1""")
        k.lab(f"redo{c}")
        k.tsl()
        rdK(0)
        for i in range(9):
            k.e(f"v_mov_b32 v{OC+i}, v{O+i}")
        k.e("s_waitcnt lgkmcnt(0)")
        mfS(0); rdK(1); rdV(0)
        for t in range(8):
            S = SA if (t & 1) == 0 else SB
            if t == 0:
                k.e("s_nop 7")
            q4(S, 0)
            if t < 7:
                k.e("s_waitcnt lgkmcnt(2)")
                mfS(t + 1)
            if t + 2 <= 7: rdK(t + 2)
            q4(S, 1)
            for i in range(4):
                k.e(f"v_exp_f32 v{S+8+i}, v{S+8+i}")
            k.e(f"s_waitcnt lgkmcnt({1 if t + 2 <= 7 else 0})")
            k.e(f"v_mfma_f32_32x32x16_bf16 {vr(O,16)}, {vr(VB,4)}, {vr(P,4)}, {vr(O,16)}")
            for d in range(2):
                k.e(f"v_cvt_pk_bf16_f32 v{P+4+d}, v{S+8+2*d}, v{S+8+2*d+1}")
            q4(S, 3)
            if c < 4:
                woload(c, t)
            else:
                k.e("s_nop 0")
            k.e("s_nop 0")
            k.e(f"v_mfma_f32_32x32x16_bf16 {vr(O,16)}, {vr(VB+4,4)}, {vr(P+4,4)}, {vr(O,16)}")
            if t + 1 <= 7: rdV(t + 1)
        k.e("s_nop 15\ns_nop 2\nv_readfirstlane_b32 s49, v0")
        k.e(f"""s_cmp_lg_u32 s25, 0
s_cbranch_scc1 {k.ref(f'nochk{c}')}
v_cmp_ngt_f32 vcc, s27, v{L}
s_cbranch_vccnz {k.ref('rollback')}""")
        k.lab(f"nochk{c}")
        k.e(f"""v_cmp_lt_f32 vcc, s28, v{L}
s_cbranch_vccz {k.ref(f'next{c}')}""")
        k.e(f"""v_frexp_exp_i32_f32 v13, v{L}
s_nop 0
v_sub_u32 v14, 0, v13
v_cvt_f32_i32 v15, v13""")
        for i in range(9):
            k.e(f"v_ldexp_f32 v{O+i}, v{O+i}, v14")
        for i in range(16):
            k.e(f"v_sub_f32 v{CN+i}, v{CN+i}, v15")
        k.lab(f"next{c}")
        k.e("s_mov_b32 s26, 0")
        if c < 4:
            k.e("s_add_u32 s32, s32, 16384\ns_add_u32 s33, s33, 16384")
        if c == 0:
            k.e(f"s_cmp_lg_u32 s47, 0\ns_cbranch_scc1 {k.ref('nobar')}\ns_waitcnt vmcnt(8)\ns_barrier")
            k.lab("nobar")
        k.e(f"""s_cmp_ge_u32 s49, 8
s_cbranch_scc1 {k.ref(f'fix{min(c+1,4)}')}
s_lshr_b32 s20, s49, 1
s_and_b32 s21, s49, 1
s_lshl_b32 s21, s21, 2
s_add_u32 s20, s20, s21
s_lshl_b32 s20, s20, 13
v_add_u32 v{vKA}, s20, v3
s_add_u32 s21, s20, 65536
v_add_u32 v{vVA}, s21, v99""")
        if c == 4:
            k.e(f"s_branch {k.ref('chunk4')}")
    for c in range(1, 4):
        k.lab(f"fix{c}")
        for t in range(8):
            woload(c, t)
        k.e("s_add_u32 s32, s32, 16384\ns_add_u32 s33, s33, 16384")
    k.lab("fix4")
    k.e(f"s_branch {k.ref('rend')}")
    k.lab("rollback")
    k.e("s_mov_b32 s48, 8")
    for i in range(9):
        k.e(f"v_mov_b32 v{O+i}, v{OC+i}")
    k.lab("slow")
    MX = 13
    k.e(f"v_mov_b32 v{MX}, 0xff7fffff\nv_mov_b32 v14, v{vKA}")
    k.lab("slow_loop")
    k.e(f"""ds_read_b128 {vr(KB,4)}, v14
ds_read_b128 {vr(P,4)}, v14 offset:1024
v_add_u32 v14, 2048, v14
s_waitcnt lgkmcnt(1)
v_mfma_f32_32x32x16_bf16 {vr(SA,16)}, {vr(KB,4)}, {vr(QF,4)}, {vr(CN,16)}
s_waitcnt lgkmcnt(0)
v_mfma_f32_32x32x16_bf16 {vr(SB,16)}, {vr(P,4)}, {vr(QF,4)}, {vr(CN,16)}
s_nop 11""")
    for i in range(8):
        k.e(f"v_max3_f32 v{MX}, v{SA+2*i}, v{SA+2*i+1}, v{MX}")
    k.e("s_nop 3")
    for i in range(8):
        k.e(f"v_max3_f32 v{MX}, v{SB+2*i}, v{SB+2*i+1}, v{MX}")
    k.e(f"s_sub_u32 s48, s48, 2\ns_cmp_lg_u32 s48, 0\ns_cbranch_scc1 {k.ref('slow_loop')}")
    k.e(f"""v_mov_b32 v14, v{MX}
s_nop 1
v_permlane32_swap_b32 v14, v{MX}
s_nop 1
v_max_f32 v{MX}, v14, v{MX}
v_ceil_f32 v{MX}, v{MX}
v_max_f32 v{MX}, s26, v{MX}
v_cvt_i32_f32 v14, v{MX}
v_sub_u32 v14, 0, v14""")
    for i in range(9):
        k.e(f"v_ldexp_f32 v{O+i}, v{O+i}, v14")
    for i in range(16):
        k.e(f"v_sub_f32 v{CN+i}, v{CN+i}, v{MX}")
    k.e(f"""s_cmp_eq_u32 s26, 0
s_cselect_b32 s25, 1, 0
s_mov_b32 s26, 0""")
    for c in range(4):
        k.e(f"s_cmp_eq_u32 s24, {c}\ns_cbranch_scc1 {k.ref(f'redo{c}')}")
    k.e(f"s_branch {k.ref('redo4')}")
    k.lab("rend")
    k.tsl()
    k.e(f"""s_cmp_lg_u32 s47, 0
s_cbranch_scc1 {k.ref('nopre')}
v_lshl_add_u32 v13, s3, 6, v2
s_lshr_b32 s20, s2, 3
s_and_b32 s21, s2, 7
s_lshr_b32 s21, s21, 1
s_mul_i32 s21, s21, 896
s_mul_i32 s22, s20, {16*3584}
s_add_u32 s21, s21, s22
v_bfe_u32 v14, v13, 3, 4
v_mul_u32_u24 v14, 3584, v14
v_and_b32 v15, 7, v13
v_lshl_add_u32 v14, v15, 7, v14
s_mov_b32 m0, {CNT + 64}
s_cmp_ge_u32 s3, 4
s_cbranch_scc1 {k.ref('pre2')}
s_cmp_ge_u32 s3, 2
s_cbranch_scc1 {k.ref('preu')}
buffer_load_dword v14, s[60:63], s21 offen lds
s_branch {k.ref('pre2')}""")
    k.lab("preu")
    k.e("buffer_load_dword v14, s[64:67], s21 offen lds")
    k.lab("pre2")
    k.e(f"""s_cmp_ge_u32 s3, 7
s_cbranch_scc1 {k.ref('nopre')}
s_mul_i32 s21, s20, {56*1024}
v_lshlrev_b32 v14, 7, v13
buffer_load_dword v14, s[12:15], s21 offen lds""")
    k.lab("nopre")
    k.e(f"""s_mul_i32 s33, s45, 2560
s_add_u32 s33, s33, {XBUF}
v_lshlrev_b32 v14, 2, v2
v_add_u32 v14, s33, v14
s_cmp_eq_u32 s46, 0
s_cbranch_scc1 {k.ref('nopub')}""")
    for i in range(9):
        k.e(f"ds_write_b32 v14, v{O+i} offset:{256*i}")
    k.e(f"ds_write_b32 v14, v{CN} offset:{256*9}")
    k.lab("nopub")
    k.e("s_waitcnt lgkmcnt(0)\ns_barrier")
    k.e(f"s_cmp_lg_u32 s46, 0\ns_cbranch_scc1 {k.ref('nomerge')}")
    for i in range(10):
        k.e(f"ds_read_b32 v{SA+i}, v14 offset:{256*i}")
    k.e("s_waitcnt lgkmcnt(0)")
    k.e(f"""v_min_f32 v13, v{CN}, v{SA+9}
v_sub_f32 v14, v13, v{CN}
v_sub_f32 v15, v13, v{SA+9}
v_exp_f32 v14, v14
v_exp_f32 v15, v15
s_nop 0""")
    for i in range(9):
        k.e(f"v_mul_f32 v{O+i}, v{O+i}, v14")
    for i in range(9):
        k.e(f"v_fmac_f32 v{O+i}, v{SA+i}, v15")
    k.e(f"v_rcp_f32 v13, v{L}\ns_nop 0")
    for i in range(8):
        k.e(f"v_mul_f32 v{O+i}, v{O+i}, v13")
    for d in range(4):
        k.e(f"v_cvt_pk_bf16_f32 v{SA+d}, v{O+2*d}, v{O+2*d+1}")
    k.e(f"""v_bfe_u32 v14, v2, 4, 1
s_lshl_b32 s33, s45, 1
v_add_u32 v14, s33, v14
v_mul_u32_u24 v14, 528, v14
v_and_b32 v15, 15, v2
v_lshl_add_u32 v14, v15, 5, v14
v_lshrrev_b32 v15, 5, v2
v_lshl_add_u32 v14, v15, 3, v14
v_add_u32 v14, {OBUF}, v14
ds_write_b64 v14, {vr(SA,2)}
ds_write_b64 v14, {vr(SA+2,2)} offset:16
s_waitcnt lgkmcnt(0)""")
    k.lab("nomerge")
    k.e("s_barrier")
    k.tsl()
    k.e(f"""v_and_b32 v14, 7, v2
v_mul_u32_u24 v14, 528, v14
v_lshrrev_b32 v15, 4, v2
v_lshl_add_u32 v14, v15, 4, v14
v_add_u32 v14, {OBUF}, v14""")
    for s in range(8):
        k.e(f"ds_read_b128 {vr(SA+4*s,4)}, v14 offset:{64*s}")
    k.e(f"s_waitcnt vmcnt(0)\ns_cmp_lg_u32 s47, 0\ns_cbranch_scc1 {k.ref('proj1')}")
    for s in range(8):
        k.e(f"s_waitcnt lgkmcnt({7-s})")
        for ct in range(4):
            c = "0" if s == 0 else vr(ACC+4*ct, 4)
            k.e(f"v_mfma_f32_16x16x32_bf16 {vr(ACC+4*ct,4)}, {vr(WOF+4*(8*ct+s),4)}, {vr(SA+4*s,4)}, {c}")
    for i in range(4):
        k.e(f"v_mov_b32 v{QF+i}, v{QF1+i}")
    k.e(f"s_mov_b32 s47, 1")
    k.e(f"s_branch {k.ref('round')}")
    k.lab("proj1")
    GA, SBB, CBB, XR = 64, 80, 96, 16
    k.e(f"""s_lshl_b32 s33, s3, 6
v_lshl_add_u32 v4, v15, 2, s33
v_lshlrev_b32 v5, 2, v4
v_add_u32 v5, {MBUF}, v5
v_and_b32 v6, 7, v2
v_lshlrev_b32 v6, 10, v6
v_lshl_add_u32 v6, v4, 1, v6
v_add_u32 v7, {XIN}, v6""")
    for s in range(8):
        k.e(f"s_waitcnt lgkmcnt({7-s})")
        for ct in range(4):
            k.e(f"v_mfma_f32_16x16x32_bf16 {vr(ACC+4*ct,4)}, {vr(WOF+4*(8*ct+s),4)}, {vr(SA+4*s,4)}, {vr(ACC+4*ct,4)}")
    for i in range(3):
        for ct in range(4):
            k.e(f"ds_read_b128 {vr(64+16*i+4*ct,4)}, v5 offset:{2048*i + 64*ct}")
    k.e("s_waitcnt lgkmcnt(4)")
    for ct in range(4):
        k.e(f"ds_read_b64 {vr(XR+2*ct,2)}, v7 offset:{32*ct}")
    k.e("s_waitcnt lgkmcnt(0)\ns_nop 3")
    k.tsl()
    X = 128; PK = 144; T1 = 7
    for i in range(0, 16, 2):
        round_bf16_pair(k, ACC+i, ACC+i+1, T1)
    for i in range(16):
        k.e(f"v_mul_f32 v{ACC+i}, v{ACC+i}, v{GA+i}")
    for i in range(0, 16, 2):
        round_bf16_pair(k, ACC+i, ACC+i+1, T1)
    for d in range(8):
        k.e(f"v_lshlrev_b32 v{X+2*d}, 16, v{XR+d}\nv_and_b32 v{X+2*d+1}, 0xffff0000, v{XR+d}")
    for i in range(16):
        k.e(f"v_add_f32 v{X+i}, v{X+i}, v{ACC+i}")
    for d in range(8):
        k.e(f"v_cvt_pk_bf16_f32 v{PK+d}, v{X+2*d}, v{X+2*d+1}")
    for d in range(8):
        k.e(f"v_lshlrev_b32 v{X+2*d}, 16, v{PK+d}\nv_and_b32 v{X+2*d+1}, 0xffff0000, v{PK+d}")
    k.e(f"""v_and_b32 v8, 15, v2
v_cmp_gt_u32 vcc, 8, v8
s_add_u32 s38, s37, {X1}
s_and_saveexec_b64 s[40:41], vcc""")
    for ct in range(4):
        k.e(f"buffer_store_dwordx2 {vr(PK+2*ct,2)}, v6, s[8:11], s38 offen offset:{32*ct}")
    k.e("s_mov_b64 exec, s[40:41]")
    def xreduce(reg, tmp):
        k.e(f"""v_mov_b32 v{tmp}, v{reg}
s_nop 1
v_permlane16_swap_b32 v{tmp}, v{reg}
s_nop 1
v_add_f32 v{reg}, v{tmp}, v{reg}
v_mov_b32 v{tmp}, v{reg}
s_nop 1
v_permlane32_swap_b32 v{tmp}, v{reg}
s_nop 1
v_add_f32 v{reg}, v{tmp}, v{reg}""")
    SM = 10; M2 = 11
    k.e(f"v_add_f32 v{SM}, v{X}, v{X+1}")
    for i in range(2, 16):
        k.e(f"v_add_f32 v{SM}, v{SM}, v{X+i}")
    xreduce(SM, 9)
    k.e(f"s_mov_b32 s42, 0x3c800000\nv_mul_f32 v{SM}, s42, v{SM}")
    k.e(f"v_sub_f32 v160, v{X}, v{SM}\nv_mul_f32 v{M2}, v160, v160")
    for i in range(1, 16):
        k.e(f"v_sub_f32 v160, v{X+i}, v{SM}\nv_fmac_f32 v{M2}, v160, v160")
    xreduce(M2, 9)
    k.e(f"""v_lshlrev_b32 v9, 3, v2
s_lshl_b32 s39, s3, 6
v_add_u32 v9, s39, v9
v_cmp_gt_u32 vcc, 8, v2
s_and_saveexec_b64 s[40:41], vcc
ds_write_b64 v9, v[{SM}:{M2}]
s_mov_b64 exec, s[40:41]
s_waitcnt lgkmcnt(0)
s_barrier
v_and_b32 v9, 7, v2
v_lshlrev_b32 v9, 3, v9""")
    for w in range(8):
        k.e(f"ds_read_b64 v[{160+2*w}:{161+2*w}], v9 offset:{64*w}")
    k.e("s_waitcnt lgkmcnt(0)")
    k.e(f"v_add_f32 v{SM}, v160, v162\nv_add_f32 v{M2}, v161, v163")
    for w in range(2, 8):
        k.e(f"v_add_f32 v{SM}, v{SM}, v{160+2*w}\nv_add_f32 v{M2}, v{M2}, v{161+2*w}")
    k.e(f"s_mov_b32 s42, 0x3e000000\nv_mul_f32 v{SM}, s42, v{SM}")
    k.e(f"v_sub_f32 v160, v160, v{SM}\nv_mul_f32 v176, v160, v160")
    for w in range(1, 8):
        k.e(f"v_sub_f32 v{160+2*w}, v{160+2*w}, v{SM}\nv_fmac_f32 v176, v{160+2*w}, v{160+2*w}")
    k.e(f"""s_mov_b32 s42, 0x42800000
v_fmac_f32 v{M2}, s42, v176
s_mov_b32 s42, 0x3b000000
v_mov_b32 v9, 0x3727c5ac
v_fma_f32 v{M2}, v{M2}, s42, v9
v_rsq_f32 v{M2}, v{M2}""")
    for i in range(16):
        k.e(f"v_sub_f32 v{X+i}, v{X+i}, v{SM}")
    for i in range(16):
        k.e(f"v_mul_f32 v{X+i}, v{X+i}, v{M2}")
    for i in range(16):
        k.e(f"v_add_f32 v{CBB+i}, 1.0, v{CBB+i}")
    for i in range(0, 16, 2):
        round_bf16_pair(k, CBB+i, CBB+i+1, T1)
    for i in range(16):
        k.e(f"v_fma_f32 v{X+i}, v{X+i}, v{CBB+i}, v{SBB+i}")
    for d in range(8):
        k.e(f"v_cvt_pk_bf16_f32 v{PK+d}, v{X+2*d}, v{X+2*d+1}")
    k.e(f"""v_and_b32 v8, 7, v2
s_and_b32 s43, s2, 3
s_lshl_b32 s43, s43, 3
v_add_u32 v8, s43, v8
v_lshrrev_b32 v9, 5, v2
v_lshl_add_u32 v8, v9, 5, v8
v_lshlrev_b32 v8, 4, v8
v_bfe_u32 v9, v2, 4, 1
v_lshl_add_u32 v8, v9, 3, v8
s_lshr_b32 s43, s2, 2
s_lshl_b32 s43, s43, 15
s_lshl_b32 s44, s3, 12
s_add_u32 s43, s43, s44
s_add_u32 s43, s43, {H2F}
v_and_b32 v9, 15, v2
v_cmp_gt_u32 vcc, 8, v9
s_and_saveexec_b64 s[40:41], vcc""")
    for ct in range(4):
        k.e(f"buffer_store_dwordx2 {vr(PK+2*ct,2)}, v8, s[8:11], s43 offen offset:{1024*ct}")
    k.lab("end")
    k.e("s_endpgm")
    return k, GRID, 512, LDS, 256
```

```python
from gen import *
from gen_rest import round_bf16_pair
def ar(a, n):
    return f"a[{a}:{a+n-1}]"

def gen_k4(NB=5, NPRO=2):
    k = Kern("k4_kernel")
    GRID = 256
    STG = 32768
    k.e(f"s_cmp_ge_u32 s2, {GRID}\ns_cbranch_scc1 {k.ref('end')}")
    k.e("s_load_dwordx4 s[12:15], s[0:1], 48\ns_load_dwordx2 s[18:19], s[0:1], 104")
    k.e("""v_lshrrev_b32 v1, 6, v0
v_and_b32 v2, 63, v0
s_and_b32 s20, s2, 1
s_lshl_b32 s20, s20, 3
s_bfe_u32 s21, s2, 0x30003
s_add_u32 s21, s21, s20
s_bfe_u32 s20, s2, 0x20001
s_lshl_b32 s20, s20, 2
s_lshr_b32 s22, s2, 6
s_add_u32 s20, s20, s22
v_readfirstlane_b32 s3, v1
v_lshlrev_b32 v3, 4, v2
s_waitcnt lgkmcnt(0)""")
    k.srd(4, 12, 512*1792*2)
    k.srd(32, 14, 512*1792*2)
    k.srd(8, 18, WS_SIZE)
    k.e("""v_lshrrev_b32 v4, 4, v2
v_and_b32 v5, 15, v2
v_mul_u32_u24 v6, 3584, v4
v_lshlrev_b32 v7, 1, v4
v_xor_b32 v8, v5, v7
v_lshl_add_u32 v86, v8, 4, v6
v_xor_b32 v8, 8, v8
v_lshl_add_u32 v87, v8, 4, v6""")
    k.e(f"""s_mul_i32 s22, s3, {16*3584}
s_mul_i32 s23, s20, 224
s_add_u32 s22, s22, s23
s_lshl_b32 s23, s3, 12
s_lshl_b32 s26, s21, 2
s_add_u32 s26, s26, s3
s_lshl_b32 s27, s26, 15
s_add_u32 s27, s27, {H2F}""")
    def op_dma(st, m, i):
        buf = st % NB
        return f"""s_add_u32 s28, s23, {buf*STG + m*16384 + i*1024}
s_mov_b32 m0, s28
s_add_u32 s29, s22, {(st*64 + 4*i)*3584}
buffer_load_dwordx4 v{86+m}, s[{4 if m == 0 else 32}:{7 if m == 0 else 35}], s29 offen lds"""
    def op_b(s):
        return f"s_add_u32 s29, s27, {(s>>2)*4096}\nbuffer_load_dwordx4 {vr(128+4*s,4)}, v3, s[8:11], s29 offen offset:{(s&3)*1024}"
    groups = []
    for st in range(8):
        g = []
        for i in range(4):
            g.append(op_dma(st, 0, i)); g.append(op_dma(st, 1, i)); g.append(op_b(4*st + i))
        groups.append(g)
    issued = [0]
    gend = {}
    def issue(op, st, last):
        k.e(op); issued[0] += 1
        if last: gend[st] = issued[0]
    for st in range(NPRO):
        for j, op in enumerate(groups[st]):
            issue(op, st, j == len(groups[st]) - 1)
    pend = []
    for st in range(NPRO, 8):
        for j, op in enumerate(groups[st]):
            pend.append((op, st, j == len(groups[st]) - 1, (st - NB + 2) if st >= NB else -1))
    bar_passed = [0]
    k.e("""v_and_b32 v6, 1, v4
v_lshrrev_b32 v7, 1, v4
v_lshrrev_b32 v8, 2, v5
v_lshlrev_b32 v9, 14, v6
v_lshl_add_u32 v10, v7, 3, v8
v_lshl_add_u32 v9, v10, 8, v9
v_and_b32 v10, 3, v5
v_lshl_add_u32 v9, v10, 3, v9
v_lshl_add_u32 v10, v6, 2, v8""")
    for i in range(7):
        k.e(f"v_xor_b32 v11, {i}, v10\nv_lshl_add_u32 v{72+i}, v11, 5, v9\nv_add_u32 v{79+i}, 65536, v{72+i}\nv_add_u32 v{88+i}, 131072, v{72+i}")
    AB = [16, 44]
    def rd(kap, i):
        st, s4 = kap >> 2, kap & 3
        off = (st % NB) * STG + s4 * 4096
        base = (72, 79, 88)[off >> 16] + i
        off &= 65535
        b = AB[kap & 1] + 4*i
        k.e(f"ds_read_b64_tr_b16 {vr(b,2)}, v{base} offset:{off}\nds_read_b64_tr_b16 {vr(b+2,2)}, v{base} offset:{off+1024}")
    k.ts(0)
    k.e(f"s_waitcnt vmcnt({issued[0] - gend[0]})\ns_barrier")
    k.ts(1)
    for i in range(7): rd(0, i)
    for kap in range(32):
        st = kap >> 2
        if kap + 1 < 32 and ((kap + 1) & 3) == 0:
            nst = st + 1
            assert nst in gend, (nst, gend)
            k.e(f"s_waitcnt vmcnt({issued[0] - gend[nst]})\ns_barrier")
            bar_passed[0] = nst
            if nst in (1, 2, 4, 6): k.ts({1:2, 2:3, 4:4, 6:5}[nst])
        for i in range(7):
            if kap + 1 < 32:
                k.e("s_waitcnt lgkmcnt(12)")
            else:
                k.e(f"s_waitcnt lgkmcnt({2*(6-i)})")
            c = "0" if kap == 0 else ar(16*i, 16)
            k.e(f"v_mfma_f32_32x32x16_bf16 {ar(16*i,16)}, {vr(AB[kap&1]+4*i,4)}, {vr(128+4*kap,4)}, {c}")
            if kap + 1 < 32:
                rd(kap + 1, i)
            if pend and pend[0][3] <= bar_passed[0] and (kap < 8 or (i & 1) == 0):
                op, pst, last, _ = pend.pop(0)
                issue(op, pst, last)
    assert not pend
    k.e("s_nop 15\ns_nop 3")
    k.ts(6)
    k.e(f"""s_mul_i32 s27, s26, 114688
s_mul_i32 s28, s20, 7168
s_add_u32 s27, s27, s28
s_add_u32 s27, s27, {HHF}""")
    for i in range(7):
        T = 16 + 24 * (i & 1)
        for r in range(16):
            k.e(f"v_accvgpr_read_b32 v{T+r}, a{16*i+r}")
        for r in range(8):
            k.e(f"v_max_f32 v{T+r}, 0, v{T+r}")
        for r in range(8):
            k.e(f"v_mul_f32 v{T+r}, v{T+r}, v{T+8+r}")
        for d in range(4):
            k.e(f"v_cvt_pk_bf16_f32 v{T+16+d}, v{T+2*d}, v{T+2*d+1}")
        k.e(f"""s_nop 1
v_permlane32_swap_b32 v{T+16}, v{T+18}
v_permlane32_swap_b32 v{T+17}, v{T+19}
buffer_store_dwordx4 {vr(T+16,4)}, v3, s[8:11], s27 offen offset:{(i&3)*1024}""")
        if i == 3:
            k.e("s_add_u32 s27, s27, 4096")
    k.lab("end")
    k.e("s_endpgm")
    return k, GRID, 256, NB*STG, (256 + 112, 256)
```

```python
from gen import *
from gen_rest import round_bf16_pair

def gen_k5(D=10):
    k = Kern("k5_kernel")
    GRID = 256
    k.e(f"s_cmp_ge_u32 s2, {GRID}\ns_cbranch_scc1 {k.ref('end')}")
    k.e("s_load_dwordx2 s[16:17], s[0:1], 88\ns_load_dwordx2 s[18:19], s[0:1], 104\ns_load_dwordx2 s[12:13], s[0:1], 64")
    k.e("""v_lshrrev_b32 v1, 6, v0
v_and_b32 v2, 63, v0
s_and_b32 s20, s2, 7
s_bfe_u32 s21, s2, 0x20003
s_lshl_b32 s21, s21, 3
s_add_u32 s20, s20, s21
s_lshr_b32 s21, s2, 5
v_readfirstlane_b32 s3, v1
v_lshlrev_b32 v3, 4, v2
s_waitcnt lgkmcnt(0)""")
    k.srd(4, 16, 2048*512*2)
    k.srd(8, 18, WS_SIZE)
    k.srd(36, 12, 1792*512*2)
    k.e(f"""s_lshr_b32 s22, s3, 1
s_and_b32 s23, s3, 1
s_lshl_b32 s24, s20, 1
s_add_u32 s24, s24, s23
s_lshl_b32 s24, s24, 15
s_lshl_b32 s25, s21, 6
s_lshl_b32 s26, s22, 5
s_add_u32 s25, s25, s26
v_and_b32 v4, 31, v2
v_lshlrev_b32 v4, 10, v4
v_lshrrev_b32 v5, 5, v2
v_lshl_add_u32 v6, v5, 3, v4
s_lshl_b32 s26, s25, 1
s_add_u32 s24, s24, s26
s_add_u32 s27, s24, {X1}
v_lshlrev_b32 v7, 4, v5
s_lshl_b32 s26, s25, 2
s_add_u32 s26, s26, {MODF + 2560*4}""")
    for q in range(4):
        k.e(f"buffer_load_dwordx2 {vr(8+2*q,2)}, v6, s[8:11], s27 offen offset:{16*q}")
    for q in range(4):
        k.e(f"buffer_load_dwordx4 {vr(240+4*q,4)}, v7, s[8:11], s26 offen offset:{32*q}")
    k.e("""v_lshrrev_b32 v60, 3, v2
v_and_b32 v61, 7, v2
v_bfe_u32 v62, v2, 4, 1
v_lshlrev_b32 v62, 2, v62
v_xor_b32 v61, v61, v62
v_lshlrev_b32 v60, 10, v60
v_lshl_add_u32 v63, v61, 4, v60""")
    RING = D * 2048
    k.e(f"""s_mul_i32 s30, s3, {448*1024}
s_lshl_b32 s28, s21, 7
s_add_u32 s30, s30, s28
s_mul_i32 s31, s3, {RING}
s_mul_i32 s28, s3, {28*1024}
s_mul_i32 s32, s20, {2*114688}
s_add_u32 s32, s32, s28
s_add_u32 s32, s32, {HHF}
s_add_u32 s33, s32, 114688""")
    k.e("""v_lshrrev_b32 v56, 4, v2
v_and_b32 v57, 15, v2
v_and_b32 v58, 1, v56
v_lshrrev_b32 v59, 1, v56
v_lshrrev_b32 v60, 2, v57
v_lshl_add_u32 v60, v59, 3, v60
v_lshlrev_b32 v60, 7, v60
v_lshl_add_u32 v60, v58, 5, v60
v_and_b32 v61, 3, v57
v_lshl_add_u32 v60, v61, 3, v60
v_add_u32 v60, s31, v60
v_bfe_u32 v61, v57, 3, 1
v_lshl_add_u32 v64, v61, 6, v60
v_xor_b32 v61, 1, v61
v_lshl_add_u32 v65, v61, 6, v60""")
    FRB = 96; FRA = 72; ACCB = 16
    def ac(t): return f"a[{16*t}:{16*t+15}]"
    def load_ops(kap):
        sl = kap % D
        b = FRB + 8 * sl
        ops = [f"""s_add_u32 s28, s31, {sl*2048}
s_mov_b32 m0, s28
s_add_u32 s29, s30, {kap*16*1024}
buffer_load_dwordx4 v63, s[36:39], s29 offen lds""", f"""s_add_u32 s28, s31, {sl*2048+1024}
s_mov_b32 m0, s28
s_add_u32 s29, s30, {kap*16*1024 + 8192}
buffer_load_dwordx4 v63, s[36:39], s29 offen lds""",
        f"s_add_u32 s29, s32, {(kap>>2)*4096}\nbuffer_load_dwordx4 {vr(b,4)}, v3, s[8:11], s29 offen offset:{(kap&3)*1024}",
        f"s_add_u32 s29, s33, {(kap>>2)*4096}\nbuffer_load_dwordx4 {vr(b+4,4)}, v3, s[8:11], s29 offen offset:{(kap&3)*1024}"]
        return ops
    def loads(kap):
        for op in load_ops(kap): k.e(op)
    def trr(kap):
        sl = kap % D
        b = FRA + 8 * (kap & 1)
        for a in range(2):
            k.e(f"ds_read_b64_tr_b16 {vr(b+4*a,2)}, v{64+a} offset:{sl*2048}\nds_read_b64_tr_b16 {vr(b+4*a+2,2)}, v{64+a} offset:{sl*2048+512}")
    NK = 28
    for kap in range(D): loads(kap)
    k.ts(0)
    k.e(f"s_waitcnt vmcnt({4*(D-1)})")
    trr(0)
    for kap in range(NK):
        if kap + 1 < NK:
            issued = min(NK, kap + D)
            k.e(f"s_waitcnt vmcnt({4*(issued - kap - 2)})")
            trr(kap + 1)
            k.e("s_waitcnt lgkmcnt(4)")
        else:
            k.e("s_waitcnt lgkmcnt(0)")
        if kap in (0, 9, 10, 18, 27): k.ts({0:1, 9:2, 10:3, 18:4, 27:5}[kap])
        b = FRB + 8 * (kap % D); a_ = FRA + 8 * (kap & 1)
        ops = load_ops(kap + D) if kap + D < NK else []
        for a in range(2):
            for bb in range(2):
                t = a*2 + bb
                c = "0" if kap == 0 else ac(t)
                k.e(f"v_mfma_f32_32x32x16_bf16 {ac(t)}, {vr(a_+4*a,4)}, {vr(b+4*bb,4)}, {c}")
                if ops and t in (0, 1): k.e(ops[t])
                if ops and t == 2: k.e(ops[2])
                if ops and t == 3: k.e(ops[3])
    k.e("s_nop 15\ns_nop 3\ns_barrier")
    ACC = 16
    for r in range(64):
        k.e(f"v_accvgpr_read_b32 v{ACC+r}, a{r}")
    k.e("s_lshl_b32 s34, s3, 14\nv_add_u32 v4, s34, v3")
    for t in range(4):
        k.e(f"s_cmp_eq_u32 s3, {t}\ns_cbranch_scc1 {k.ref('skipw%d' % t)}")
        for c in range(4):
            k.e(f"ds_write_b128 v4, {vr(ACC+16*t+4*c,4)} offset:{t*4096 + c*1024}")
        k.lab("skipw%d" % t)
    k.e("s_waitcnt lgkmcnt(0)\ns_barrier")
    k.ts(6)
    R = 80
    for t in range(4):
        k.e(f"s_cmp_lg_u32 s3, {t}\ns_cbranch_scc1 {k.ref('skipm%d' % t)}")
        for r in range(16):
            k.e(f"v_mov_b32 v{R+r}, v{ACC+16*t+r}")
        k.lab("skipm%d" % t)
    k.e("s_lshl_b32 s34, s3, 12\nv_add_u32 v4, s34, v3")
    for ow in range(4):
        for c in range(4):
            k.e(f"ds_read_b128 {vr(96+16*ow+4*c,4)}, v4 offset:{ow*16384 + c*1024}")
    k.e("s_waitcnt lgkmcnt(0)")
    for ow in range(4):
        k.e(f"s_cmp_eq_u32 s3, {ow}\ns_cbranch_scc1 {k.ref('skipa%d' % ow)}")
        for r in range(16):
            k.e(f"v_add_f32 v{R+r}, v{R+r}, v{96+16*ow+r}")
        k.lab("skipa%d" % ow)
    for i in range(0, 16, 2):
        round_bf16_pair(k, R+i, R+i+1, 4)
    for i in range(16):
        k.e(f"v_mul_f32 v{R+i}, v{R+i}, v{240+i}")
    for i in range(0, 16, 2):
        round_bf16_pair(k, R+i, R+i+1, 4)
    for d in range(8):
        k.e(f"v_lshlrev_b32 v{96+2*d}, 16, v{8+d}\nv_and_b32 v{97+2*d}, 0xffff0000, v{8+d}")
    for i in range(16):
        k.e(f"v_add_f32 v{R+i}, v{R+i}, v{96+i}")
    for d in range(8):
        k.e(f"v_cvt_pk_bf16_f32 v{112+d}, v{R+2*d}, v{R+2*d+1}")
    k.e("""s_nop 1
v_permlane32_swap_b32 v112, v114
v_permlane32_swap_b32 v113, v115
v_permlane32_swap_b32 v116, v118
v_permlane32_swap_b32 v117, v119
v_and_b32 v4, 31, v2
v_lshlrev_b32 v4, 10, v4
v_lshl_add_u32 v4, v5, 4, v4
buffer_store_dwordx4 v[112:115], v4, s[4:7], s24 offen
buffer_store_dwordx4 v[116:119], v4, s[4:7], s24 offen offset:32""")
    k.lab("end")
    k.e("s_endpgm")
    return k, GRID, 256, max(65536, 4*RING), (256 + 64, 256)
```

```python
from gen import *

def dpp_reduce(k, regs):
    seq = ["quad_perm:[1,0,3,2] row_mask:0xf bank_mask:0xf",
           "quad_perm:[2,3,0,1] row_mask:0xf bank_mask:0xf",
           "row_half_mirror row_mask:0xf bank_mask:0xf",
           "row_mirror row_mask:0xf bank_mask:0xf",
           "row_bcast:15 row_mask:0xa bank_mask:0xf",
           "row_bcast:31 row_mask:0xc bank_mask:0xf"]
    for sq in seq:
        for r in regs:
            k.e(f"v_add_f32_dpp v{r}, v{r}, v{r} {sq}")
        if len(regs) < 3:
            k.e("s_nop 1")

def round_bf16_pair(k, a, b, tmp):
    k.e(f"v_cvt_pk_bf16_f32 v{tmp}, v{a}, v{b}\nv_lshlrev_b32 v{a}, 16, v{tmp}\nv_and_b32 v{b}, 0xffff0000, v{tmp}")

def gen_k1():
    k = Kern("k1_kernel")
    GRID = 256
    k.e(f"s_cmp_ge_u32 s2, {GRID}\ns_cbranch_scc1 {k.ref('end')}")
    k.e("s_load_dwordx2 s[16:17], s[0:1], 0\ns_load_dwordx2 s[18:19], s[0:1], 104")
    k.e("""v_lshrrev_b32 v1, 6, v0
v_and_b32 v2, 63, v0
s_lshr_b32 s21, s2, 5
s_bfe_u32 s22, s2, 0x20003
s_and_b32 s23, s2, 7
s_lshl_b32 s23, s23, 3
s_add_u32 s21, s21, s23
v_readfirstlane_b32 s3, v1
v_lshlrev_b32 v3, 4, v2
v_lshlrev_b32 v4, 5, v2
s_waitcnt lgkmcnt(0)""")
    k.srd(4, 16, 2048*512*2)
    k.srd(8, 18, WS_SIZE)
    k.e("""s_lshl_b32 s23, s21, 5
s_lshl_b32 s24, s3, 3
s_add_u32 s23, s23, s24
s_lshl_b32 s23, s23, 10""")
    for t in range(8):
        k.e(f"buffer_load_dwordx4 v[{16+4*t}:{19+4*t}], v3, s[4:7], s23 offen offset:{(t&3)*1024}")
        if t == 3:
            k.e("s_add_u32 s23, s23, 4096")
    k.e(f"""s_mov_b32 s25, {MODF}
buffer_load_dwordx4 v[112:115], v4, s[8:11], s25 offen
buffer_load_dwordx4 v[116:119], v4, s[8:11], s25 offen offset:16
buffer_load_dwordx4 v[120:123], v4, s[8:11], s25 offen offset:2048
buffer_load_dwordx4 v[124:127], v4, s[8:11], s25 offen offset:2064""")
    k.e(f"""s_lshl_b32 s26, s22, 2
s_add_u32 s26, s26, s3
s_lshl_b32 s27, s26, 15
s_add_u32 s27, s27, {WQKV}""")
    def wload(s):
        k.e(f"buffer_load_dwordx4 {vr(128+4*s,4)}, v3, s[8:11], s27 offen offset:{(s&3)*1024}")
        if (s & 3) == 3:
            k.e("s_add_u32 s27, s27, 4096")
    for s in range(8): wload(s)
    k.ts(0)
    k.e("s_waitcnt vmcnt(12)")
    k.ts(1)
    X = 48
    for t in range(8):
        for d in range(4):
            k.e(f"v_lshlrev_b32 v{X+8*t+2*d}, 16, v{16+4*t+d}\nv_and_b32 v{X+8*t+2*d+1}, 0xffff0000, v{16+4*t+d}")
    S = 8
    for t in range(8):
        b = X + 8*t
        k.e(f"v_add_f32 v{S+t}, v{b}, v{b+1}")
    for i in range(2, 8):
        for t in range(8):
            k.e(f"v_add_f32 v{S+t}, v{S+t}, v{X+8*t+i}")
    dpp_reduce(k, [S+t for t in range(8)])
    k.e("s_mov_b32 s28, 0x3b000000")
    for t in range(8):
        k.e(f"v_mul_f32 v{S+t}, s28, v{S+t}")
    k.e("s_nop 0")
    for t in range(8):
        k.e(f"v_readlane_b32 s{32+t}, v{S+t}, 63")
    k.e("s_nop 1")
    for t in range(8):
        for i in range(8):
            k.e(f"v_subrev_f32 v{X+8*t+i}, s{32+t}, v{X+8*t+i}")
    for s in range(8, 20): wload(s)
    for t in range(8):
        k.e(f"v_mul_f32 v{S+t}, v{X+8*t}, v{X+8*t}")
    for i in range(1, 8):
        for t in range(8):
            k.e(f"v_fmac_f32 v{S+t}, v{X+8*t+i}, v{X+8*t+i}")
    dpp_reduce(k, [S+t for t in range(8)])
    k.e("v_mov_b32 v5, 0x3727c5ac")
    for t in range(8):
        k.e(f"v_fma_f32 v{S+t}, v{S+t}, s28, v5")
    for t in range(8):
        k.e(f"v_rsq_f32 v{S+t}, v{S+t}")
    k.e("s_nop 0")
    for t in range(8):
        k.e(f"v_readlane_b32 s{40+t}, v{S+t}, 63")
    k.ts(2)
    k.e("s_waitcnt vmcnt(20)")
    for s in range(20, 32): wload(s)
    k.e(f"s_lshl_b32 s27, s3, 13\ns_add_u32 s27, s27, {WQKV + 16*32768}")
    for s in range(8):
        k.e(f"buffer_load_dwordx4 {vr(16+4*s,4)}, v3, s[8:11], s27 offen offset:{(s&3)*1024}")
        if s == 3:
            k.e("s_add_u32 s27, s27, 4096")
    k.ts(3)
    for i in range(8):
        k.e(f"v_add_f32 v{120+i}, 1.0, v{120+i}")
    for i in range(0, 8, 2):
        round_bf16_pair(k, 120+i, 121+i, 5)
    k.e("""v_lshrrev_b32 v6, 1, v2
v_mul_u32_u24 v6, 1056, v6
v_and_b32 v7, 1, v2
v_mul_u32_u24 v7, 528, v7
v_add_u32 v6, v6, v7
s_lshl_b32 s24, s3, 7
v_add_u32 v6, s24, v6""")
    for t in range(8):
        for i in range(8):
            k.e(f"v_mul_f32 v{X+8*t+i}, s{40+t}, v{X+8*t+i}")
        for i in range(8):
            k.e(f"v_fma_f32 v{X+8*t+i}, v{X+8*t+i}, v{120+i}, v{112+i}")
        for d in range(4):
            k.e(f"v_cvt_pk_bf16_f32 v{8+4*(t&1)+d}, v{X+8*t+2*d}, v{X+8*t+2*d+1}")
        k.e(f"ds_write_b128 v6, {vr(8+4*(t&1),4)} offset:{16*t}")
    k.ts(4)
    k.e("s_waitcnt lgkmcnt(0)\ns_barrier")
    k.ts(5)
    k.e("""v_lshrrev_b32 v6, 5, v2
v_mul_u32_u24 v6, 528, v6
v_and_b32 v7, 31, v2
v_lshl_add_u32 v6, v7, 4, v6""")
    HB = 48
    ACC = 112
    def rd(s):
        k.e(f"ds_read_b128 {vr(HB+4*(s&15),4)}, v6 offset:{s*1056}")
    for s in range(16): rd(s)
    for s in range(32):
        issued = min(32, 16 + s)
        k.e(f"s_waitcnt vmcnt({39-s}) lgkmcnt({min(15, issued - (s+1))})")
        c = "0" if s == 0 else vr(ACC, 16)
        k.e(f"v_mfma_f32_32x32x16_bf16 {vr(ACC,16)}, {vr(128+4*s,4)}, {vr(HB+4*(s&15),4)}, {c}")
        if s + 16 < 32:
            rd(s + 16)
    k.e("s_nop 15\ns_nop 3")
    k.ts(6)
    k.e("s_mov_b32 s28, 0x3eb8aa3b")
    for r in range(16):
        k.e(f"v_mul_f32 v{ACC+r}, s28, v{ACC+r}")
    for d in range(8):
        k.e(f"v_cvt_pk_bf16_f32 v{96+d}, v{ACC+2*d}, v{ACC+2*d+1}")
    k.e("""s_nop 1
v_permlane32_swap_b32 v96, v98
v_permlane32_swap_b32 v97, v99
v_permlane32_swap_b32 v100, v102
v_permlane32_swap_b32 v101, v103""")
    k.e(f"""v_and_b32 v7, 31, v2
v_lshlrev_b32 v7, 10, v7
v_lshrrev_b32 v8, 5, v2
v_lshl_add_u32 v7, v8, 4, v7
s_lshl_b32 s29, s21, 15
s_lshl_b32 s30, s26, 6
s_add_u32 s29, s29, s30
s_add_u32 s29, s29, {QB}
buffer_store_dwordx4 v[96:99], v7, s[8:11], s29 offen
buffer_store_dwordx4 v[100:103], v7, s[8:11], s29 offen offset:32""")
    k.e(f"s_cmp_lg_u32 s22, 0\ns_cbranch_scc1 {k.ref('end')}")
    k.e("s_mul_i32 s28, s3, 8448\nv_add_u32 v6, s28, v6")
    for s in range(8):
        k.e(f"ds_read_b128 {vr(HB+4*s,4)}, v6 offset:{s*1056}")
    k.e("s_waitcnt vmcnt(2)")
    for s in range(8):
        k.e(f"s_waitcnt lgkmcnt({7-s})")
        c = "0" if s == 0 else vr(ACC, 16)
        k.e(f"v_mfma_f32_32x32x16_bf16 {vr(ACC,16)}, {vr(16+4*s,4)}, {vr(HB+4*s,4)}, {c}")
    k.e("s_nop 15\ns_nop 3")
    k.e("s_lshl_b32 s28, s3, 12\nv_add_u32 v6, s28, v3")
    for c in range(4):
        k.e(f"ds_write_b128 v6, {vr(ACC+4*c,4)} offset:{34816 + c*1024}")
    k.e(f"s_waitcnt lgkmcnt(0)\ns_barrier\ns_cmp_lg_u32 s3, 0\ns_cbranch_scc1 {k.ref('end')}")
    for w in range(1, 4):
        for c in range(4):
            k.e(f"ds_read_b128 {vr(HB+16*(w-1)+4*c,4)}, v3 offset:{34816 + w*4096 + c*1024}")
    k.e("s_waitcnt lgkmcnt(0)")
    for w in range(3):
        for r in range(16):
            k.e(f"v_add_f32 v{ACC+r}, v{ACC+r}, v{HB+16*w+r}")
    for d in range(8):
        k.e(f"v_cvt_pk_bf16_f32 v{32+d}, v{ACC+2*d}, v{ACC+2*d+1}")
    k.e(f"""s_nop 1
v_permlane32_swap_b32 v32, v34
v_permlane32_swap_b32 v33, v35
s_lshl_b32 s29, s21, 10
s_add_u32 s30, s29, {KF}
buffer_store_dwordx4 v[32:35], v3, s[8:11], s30 offen""")
    k.e(f"""v_bfe_u32 v7, v2, 4, 1
v_lshlrev_b32 v7, 9, v7
v_bfe_u32 v8, v2, 2, 1
v_lshl_add_u32 v7, v8, 8, v7
v_and_b32 v8, 3, v2
v_lshl_add_u32 v7, v8, 1, v7
v_bfe_u32 v8, v2, 3, 1
v_lshl_add_u32 v7, v8, 3, v7
v_lshrrev_b32 v8, 5, v2
v_lshl_add_u32 v7, v8, 6, v7
s_add_u32 s30, s29, {VF}""")
    for r in range(8):
        dv = (r & 3) + 8 * (r >> 2)
        reg = 36 + (r >> 1)
        op = "buffer_store_short" if (r & 1) == 0 else "buffer_store_short_d16_hi"
        k.e(f"{op} v{reg}, v7, s[8:11], s30 offen offset:{dv*16}")
    k.lab("end")
    k.e("s_endpgm")
    return k, GRID, 256, 34816 + 16384, 256

def more():
    import gen_k2f as gen_k2, gen_k5b, gen_k4c
    return [gen_k1(), gen_k2.gen_k2(), gen_k4c.gen_k4(), gen_k5b.gen_k5()]
```

```python
import sys, os
TIMING = os.environ.get('TIMING', '0') == '1'

MODP  = 0x000000
MODF  = 0x020000
WQKV  = 0x100000
WO    = 0x200000
WGU   = 0x300000
WD    = 0x700000
QB    = 0x900000
KF    = 0xB00000
VF    = 0xB10000
X1    = 0xC00000
H2F   = 0xE00000
HHF   = 0x1000000
WS_SIZE = 0x2000000

A_X, A_WQ, A_WK, A_WV, A_WO, B_X, B_WG, B_WU, B_WD, A_C, A_WMOD, A_OUT, A_DBG, A_WS = [8*i for i in range(14)]

class Kern:
    def __init__(self, name):
        self.name = name
        self.L = []
        self.uid = 0
    def e(self, s):
        for ln in s.strip('\n').split('\n'):
            self.L.append("    " + ln.strip())
    def c(self, s):
        self.L.append("    ; " + s)
    def lab(self, l):
        self.L.append(f"{self.name}_{l}:")
    def ref(self, l):
        return f"{self.name}_{l}"
    def ts(self, n):
        if TIMING:
            self.e(f"s_memrealtime s[{72+2*n}:{73+2*n}]")
            self.nts = max(getattr(self, 'nts', 0), n + 1)
    def tsl(self, reg=1):
        if TIMING:
            self.e(f"s_memtime s[90:91]\ns_waitcnt lgkmcnt(0)\ns_nop 0\ns_mov_b32 m0, s71\ns_nop 0\nv_writelane_b32 v{reg}, s90, m0\ns_add_u32 s71, s71, 1")
            self.tslreg = reg
    def srd(self, s, p, size):
        self.e(f"s_mov_b32 s{s}, s{p}\ns_and_b32 s{s+1}, s{p+1}, 0xffff\ns_mov_b32 s{s+2}, {size}\ns_mov_b32 s{s+3}, 0x00020000")
    def text(self, tsidx=None):
        h = f".globl {self.name}\n.p2align 8\n.type {self.name},@function\n{self.name}:\n"
        if tsidx is None:
            return h + "\n".join(self.L) + "\n"
        L = ["    s_memrealtime s[96:97]", "    s_memtime s[88:89]", "    v_lshrrev_b32 v1, 6, v0", "    s_nop 1", "    v_readfirstlane_b32 s98, v1", "    s_mov_b32 s71, 0"]
        for ln in self.L:
            if ln.strip() == "s_endpgm":
                L.append(f"    s_branch {self.name}_fin")
            else:
                L.append(ln)
        L.append(f"{self.name}_fin:")
        L += ["    " + x for x in f'''s_mov_b64 exec, -1
s_waitcnt vmcnt(0) lgkmcnt(0)
s_memrealtime s[100:101]
s_load_dwordx2 s[92:93], s[0:1], 104
s_waitcnt lgkmcnt(0)
s_and_b32 s93, s93, 0xffff
s_mov_b32 s94, 0x2000000
s_mov_b32 s95, 0x00020000
s_lshl_b32 s99, s2, 4
s_add_u32 s99, s99, s98
s_lshl_b32 s99, s99, 3
s_add_u32 s99, s99, {0x1D00000 + tsidx*0x40000}
v_mov_b32 v4, s96
v_mov_b32 v5, s100
v_mov_b32 v2, 0
buffer_store_dwordx2 v[4:5], v2, s[92:95], s99 offen'''.split("\n")]
        nts = getattr(self, 'nts', 0)
        if nts:
            L.append(f"    s_lshl_b32 s99, s2, 4\n    s_add_u32 s99, s99, s98\n    s_lshl_b32 s99, s99, 5\n    s_add_u32 s99, s99, {0x1E00000 + tsidx*0x40000}")
            for n in range(nts):
                L.append(f"    s_sub_u32 s{72+2*n}, s{72+2*n}, s96\n    v_mov_b32 v0, s{72+2*n}\n    buffer_store_dword v0, v2, s[92:95], s99 offen offset:{4*n}")
        if getattr(self, 'tslreg', None) is not None:
            L.append(f"    s_lshl_b32 s99, s2, 4\n    s_add_u32 s99, s99, s98\n    s_lshl_b32 s99, s99, 8\n    s_add_u32 s99, s99, 0x1800000\n    v_mbcnt_lo_u32_b32 v2, -1, 0\n    v_mbcnt_hi_u32_b32 v2, -1, v2\n    v_lshlrev_b32 v2, 2, v2\n    v_subrev_u32 v{self.tslreg}, s88, v{self.tslreg}\n    buffer_store_dword v{self.tslreg}, v2, s[92:95], s99 offen")
        L.append("    s_endpgm")
        return h + "\n".join(L) + "\n"
    def desc(self, nv, ns=102, acc=None):
        if isinstance(nv, tuple): nv, acc = nv
        if acc is None: acc = (nv + 3) // 4 * 4
        return f""".p2align 6
.amdhsa_kernel {self.name}
  .amdhsa_next_free_vgpr {nv}
  .amdhsa_next_free_sgpr {ns}
  .amdhsa_accum_offset {acc}
  .amdhsa_group_segment_fixed_size 0
  .amdhsa_kernarg_size 112
  .amdhsa_user_sgpr_count 2
  .amdhsa_user_sgpr_kernarg_segment_ptr 1
  .amdhsa_system_sgpr_workgroup_id_x 1
.end_amdhsa_kernel
"""

def vr(a, n):
    return f"v[{a}:{a+n-1}]"

def gen_k0():
    k = Kern("k0_kernel")
    NMOD = 96
    ranges = [("wq", 32), ("wo", 32), ("kv", 8), ("xp", 64)]
    total = NMOD + sum(n for _, n in ranges)
    k.e(f"s_cmp_ge_u32 s2, {total}\ns_cbranch_scc1 {k.ref('end')}")
    k.e("s_load_dwordx16 s[16:31], s[0:1], 0\ns_load_dwordx8 s[32:39], s[0:1], 64\ns_load_dwordx4 s[40:43], s[0:1], 96")
    k.e("v_lshrrev_b32 v1, 6, v0\nv_and_b32 v2, 63, v0")
    k.e("s_nop 0\nv_readfirstlane_b32 s3, v1")
    k.e("s_waitcnt lgkmcnt(0)")
    k.srd(8, 42, WS_SIZE)
    k.e(f"s_cmp_ge_u32 s2, {NMOD}\ns_cbranch_scc1 {k.ref('pack')}")
    k.srd(4, 36, 512*3072*2)
    k.srd(12, 34, 1024)
    k.e("""v_and_b32 v3, 3, v0
v_lshrrev_b32 v4, 2, v0
v_lshlrev_b32 v6, 4, v4
buffer_load_dwordx4 v[8:11], v6, s[12:15], 0 offen
s_mov_b32 s47, 49152
v_mul_lo_u32 v7, v4, s47
s_lshl_b32 s48, s2, 6
v_lshl_add_u32 v5, v3, 4, s48
v_add_u32 v7, v7, v5""")
    for i in range(8):
        k.e(f"s_mov_b32 s{50+i}, {6144*i}")
    for i in range(8):
        k.e(f"buffer_load_dwordx4 v[{16+4*i}:{19+4*i}], v7, s[4:7], s{50+i} offen")
    k.e("s_waitcnt vmcnt(8)")
    for d in range(4):
        k.e(f"v_lshlrev_b32 v{48+2*d}, 16, v{8+d}\nv_and_b32 v{49+2*d}, 0xffff0000, v{8+d}")
    k.e("s_mov_b32 s60, 0xbfb8aa3b")
    for i in range(8):
        k.e(f"v_mul_f32 v{56+i}, s60, v{48+i}")
    for i in range(8):
        k.e(f"v_exp_f32 v{56+i}, v{56+i}")
    k.e("s_nop 0")
    for i in range(8):
        k.e(f"v_add_f32 v{56+i}, 1.0, v{56+i}")
    for i in range(8):
        k.e(f"v_rcp_f32 v{56+i}, v{56+i}")
    k.e("s_nop 0")
    for i in range(8):
        k.e(f"v_mul_f32 v{48+i}, v{48+i}, v{56+i}")
    for d in range(4):
        k.e(f"v_cvt_pk_bf16_f32 v{56+d}, v{48+2*d}, v{49+2*d}")
    for d in range(4):
        k.e(f"v_lshlrev_b32 v{48+2*d}, 16, v{56+d}\nv_and_b32 v{49+2*d}, 0xffff0000, v{56+d}")
    k.e("s_waitcnt vmcnt(0)")
    for i in range(8):
        for d in range(4):
            src = 16 + 4*i + d
            k.e(f"v_lshlrev_b32 v56, 16, v{src}\nv_and_b32 v57, 0xffff0000, v{src}")
            if i == 0:
                k.e(f"v_mul_f32 v{64+2*d}, v{48+i}, v56\nv_mul_f32 v{65+2*d}, v{48+i}, v57")
            else:
                k.e(f"v_fmac_f32 v{64+2*d}, v{48+i}, v56\nv_fmac_f32 v{65+2*d}, v{48+i}, v57")
    k.e("""v_mul_u32_u24 v58, 144, v4
v_lshl_add_u32 v58, v3, 5, v58
ds_write_b128 v58, v[64:67]
ds_write_b128 v58, v[68:71] offset:16
s_waitcnt lgkmcnt(0)
s_barrier
v_and_b32 v59, 31, v0
v_lshrrev_b32 v60, 5, v0
v_mul_u32_u24 v61, 1152, v60
v_lshl_add_u32 v61, v59, 2, v61""")
    for i in range(8):
        k.e(f"ds_read_b32 v{64+i}, v61 offset:{144*i}")
    k.e("s_waitcnt lgkmcnt(0)")
    for i in range(1, 8):
        k.e(f"v_add_f32 v64, v64, v{64+i}")
    k.e("""v_lshlrev_b32 v62, 2, v0
ds_write_b32 v62, v64 offset:9216
s_waitcnt lgkmcnt(0)
s_barrier
v_cmp_gt_u32 vcc, 32, v0
s_and_saveexec_b64 s[54:55], vcc""")
    k.e(f"s_cbranch_execz {k.ref('end')}")
    for i in range(8):
        k.e(f"ds_read_b32 v{64+i}, v62 offset:{9216 + 128*i}")
    k.e("s_waitcnt lgkmcnt(0)")
    for i in range(1, 8):
        k.e(f"v_add_f32 v64, v64, v{64+i}")
    k.e(f"""v_cvt_pk_bf16_f32 v64, v64, v64
v_lshlrev_b32 v64, 16, v64
s_lshl_b32 s56, s2, 7
s_add_u32 s56, s56, {MODF}
buffer_store_dword v64, v62, s[8:11], s56 offen
s_endpgm""")
    k.lab("pack")
    start = NMOD
    cfg = {
        "wq": (18, 512, 512, WQKV, 5, 32768, 4, 0, 32),
        "wo": (24, 512, 512, WO, 4, 16384, 5, 0, 16),
        "wg": (28, 512, 1792, WGU, 4, 32768, 4, 0, 32),
        "wu": (30, 512, 1792, WGU, 4, 32768, 4, 16, 32),
        "wd": (32, 1792, 512, WD, 5, 114688, 4, 0, 32),
        "wk": (20, 512, 16, WQKV + 16*32768, 4, 32768, 4, 0, 32),
        "wv": (22, 512, 16, WQKV + 16*32768, 4, 32768, 4, 16, 32),
    }
    def pack_body(nm):
        p, K, N, base, lc, tstride, lk, ioff, R = cfg[nm]
        rowb = N * 2
        k.srd(4, p, K * N * 2)
        k.e(f"s_mov_b32 s60, {8*rowb}\nv_mul_lo_u32 v12, v11, s60\nv_lshl_add_u32 v12, v10, 1, v12")
        for j in range(8):
            k.e(f"s_mov_b32 s{61+j}, {j*rowb}")
        for j in range(8):
            k.e(f"buffer_load_dwordx2 v[{16+2*j}:{17+2*j}], v12, s[4:7], s{61+j} offen")
        k.e(f"""v_lshrrev_b32 v13, {lc}, v10
s_mov_b32 s60, {tstride}
v_mul_lo_u32 v13, v13, s60
v_lshrrev_b32 v14, {lk-3}, v11
v_lshl_add_u32 v13, v14, 10, v13
v_and_b32 v14, {(1 << (lk-3)) - 1}, v11
v_mul_u32_u24 v14, {R}, v14
v_and_b32 v15, {(1 << lc) - 1}, v10
v_add_u32 v14, v14, v15
v_add_u32 v14, {ioff}, v14
v_lshl_add_u32 v13, v14, 4, v13
v_add_u32 v13, {base}, v13
s_mov_b32 s70, 0x05040100
s_mov_b32 s71, 0x07060302
s_waitcnt vmcnt(0)""")
        for c in range(4):
            d = c >> 1
            sel = 70 + (c & 1)
            for m in range(4):
                k.e(f"v_perm_b32 v{32+4*c+m}, v{16+2*(2*m+1)+d}, v{16+2*(2*m)+d}, s{sel}")
        for c in range(4):
            k.e(f"buffer_store_dwordx4 v[{32+4*c}:{35+4*c}], v13, s[8:11], 0 offen offset:{16*c}")
        k.e("s_endpgm")
    for nm, n in ranges:
        nxt = start + n
        k.e(f"s_cmp_ge_u32 s2, {nxt}\ns_cbranch_scc1 {k.ref('p_after_'+nm)}")
        k.e(f"s_sub_u32 s44, s2, {start}\ns_lshl_b32 s44, s44, 2\ns_add_u32 s44, s44, s3")
        if nm in ("wq", "wo", "wg", "wu"):
            k.e("""s_lshr_b32 s45, s44, 6
s_and_b32 s46, s44, 63
s_lshl_b32 s45, s45, 8
v_lshl_add_u32 v10, v2, 2, s45
v_mov_b32 v11, s46""")
            pack_body(nm)
        elif nm == "wd":
            k.e("""s_and_b32 s45, s44, 1
s_lshr_b32 s46, s44, 1
s_lshl_b32 s45, s45, 8
v_lshl_add_u32 v10, v2, 2, s45
v_mov_b32 v11, s46""")
            pack_body(nm)
        elif nm == "xp":
            k.srd(4, 16, 2048*512*2)
            k.e(f"""s_and_b32 s45, s2, 7
s_sub_u32 s46, s2, {start}
s_lshr_b32 s46, s46, 3
s_lshl_b32 s45, s45, 18
s_lshl_b32 s46, s46, 15
s_add_u32 s45, s45, s46
v_lshlrev_b32 v10, 7, v0
buffer_load_dword v11, v10, s[4:7], s45 offen
s_endpgm""")
        else:
            k.e(f"s_cmp_ge_u32 s44, 8\ns_cbranch_scc1 {k.ref('end')}")
            k.e("""s_and_b32 s46, s44, 3
s_lshl_b32 s46, s46, 4
v_and_b32 v10, 3, v2
v_lshlrev_b32 v10, 2, v10
v_lshrrev_b32 v11, 2, v2
v_add_u32 v11, s46, v11
s_cmp_ge_u32 s44, 4""")
            k.e(f"s_cbranch_scc1 {k.ref('p_wv')}")
            pack_body("wk")
            k.lab("p_wv")
            pack_body("wv")
        k.lab("p_after_" + nm)
        start = nxt
    k.lab("end")
    k.e("s_endpgm")
    return k, total, 256, 10240, 72


def build(which=None):
    ks = []
    ks.append(gen_k0())
    import gen_rest
    ks += gen_rest.more()
    if which is not None:
        ks = ks[:which]
    hdr = open('adaLN_cond__grouped_kv_mqa__glu_gated_reglu__prompt.s.ref').read().split('; Override')[0]
    s = hdr
    for k, grid, blk, lds, nv in ks:
        s += f"; @launch kernel={k.name} grid=({grid},1,1) block=({blk},1,1) lds={lds}\n"
    s += '.amdgcn_target "amdgcn-amd-amdhsa--gfx950"\n.text\n'
    for i, (k, *_) in enumerate(ks):
        s += k.text(i if TIMING else None)
    s += '.section .rodata,"a"\n'
    for k, grid, blk, lds, nv in ks:
        s += k.desc(nv)
    return s

if __name__ == "__main__":
    out = sys.argv[1] if len(sys.argv) > 1 else "adaLN_cond__grouped_kv_mqa__glu_gated_reglu__prompt.s"
    which = int(sys.argv[2]) if len(sys.argv) > 2 else None
    open(out, "w").write(build(which))
    print("wrote", out)
```

```python
from gen import *
from gen_rest import dpp_reduce, round_bf16_pair

def gen_k2(NINIT=4, TSW=int(os.environ.get("TSW", "22"))):
    k = Kern("k2_kernel")
    GRID = 256
    QF = 4; QF1 = 8; CN = 16; SA = 32; SB = 48; P = 64; O = 72; OC = 88
    vKA, vVA = 97, 98
    KB = 100; VB = 104; ACC = 112; WOF = 128
    OBUF = 131072
    XBUF = OBUF + 4352
    MBUF = XBUF + 4 * 2560
    XIN = MBUF + 6144
    DUMP = XIN + 8192
    LDS = DUMP + 256
    assert LDS <= 163840
    L = O + 8
    k.e(f"s_cmp_ge_u32 s2, {GRID}\ns_cbranch_scc1 {k.ref('end')}")
    k.e("s_load_dwordx2 s[16:17], s[0:1], 0\ns_load_dwordx2 s[18:19], s[0:1], 104\ns_load_dwordx4 s[52:55], s[0:1], 48\ns_load_dwordx2 s[56:57], s[0:1], 64")
    k.e("""v_lshrrev_b32 v13, 6, v0
v_and_b32 v2, 63, v0
s_nop 0
v_readfirstlane_b32 s3, v13
v_lshlrev_b32 v3, 4, v2
s_waitcnt lgkmcnt(0)""")
    k.srd(4, 16, 2048*512*2)
    k.srd(8, 18, WS_SIZE)
    k.srd(60, 52, 512*1792*2)
    k.srd(64, 54, 512*1792*2)
    k.srd(12, 56, 1792*512*2)
    k.e("s_and_b32 s45, s3, 3\ns_lshr_b32 s46, s3, 2")
    k.e(f"""s_lshl_b32 s22, s2, 3
s_lshl_b32 s23, s45, 1
s_add_u32 s22, s22, s23
s_lshl_b32 s23, s22, 10
s_add_u32 s23, s23, {QB}
v_bfe_u32 v13, v2, 4, 1
v_lshlrev_b32 v13, 10, v13
v_and_b32 v14, 15, v2
v_lshl_add_u32 v13, v14, 5, v13
v_lshrrev_b32 v15, 5, v2
v_lshl_add_u32 v13, v15, 4, v13
buffer_load_dwordx4 {vr(QF,4)}, v13, s[8:11], s23 offen
buffer_load_dwordx4 {vr(QF1,4)}, v13, s[8:11], s23 offen offset:512""")
    k.e(f"""s_lshr_b32 s20, s3, 1
s_lshl_b32 s20, s20, 15
s_and_b32 s21, s3, 1
s_lshl_b32 s21, s21, 12
s_add_u32 s20, s20, s21
s_add_u32 s21, s20, {KF}
s_mov_b32 m0, s20
s_nop 0""")
    for j in range(4):
        k.e(f"buffer_load_dwordx4 v3, s[8:11], s21 offen offset:{j*1024} lds")
    k.e(f"""s_lshr_b32 s50, s3, 1
s_lshl_b32 s50, s50, 15
s_and_b32 s21, s3, 1
s_mul_i32 s21, s21, 12288
s_add_u32 s50, s50, s21
s_add_u32 s50, s50, 8192
s_lshl_b32 s51, s3, 10
s_lshl_b32 s37, s2, 13""")
    stage_ops = []
    for i in range(12):
        stage_ops.append(f"s_add_u32 s20, s50, {i*1024}\ns_mov_b32 m0, s20\ns_add_u32 s21, s20, {KF}\nbuffer_load_dwordx4 v3, s[8:11], s21 offen lds")
    stage_ops.append(f"s_add_u32 s20, s51, {XIN}\ns_mov_b32 m0, s20\ns_add_u32 s21, s37, s51\nbuffer_load_dwordx4 v3, s[4:7], s21 offen lds")
    stage_ops.append(f"s_min_u32 s20, s51, 5120\ns_add_u32 s21, s20, {MODF + 4096}\ns_add_u32 s20, s20, {MBUF}\ns_mov_b32 m0, s20\ns_nop 0\nbuffer_load_dwordx4 v3, s[8:11], s21 offen lds")
    k.e(f"""v_lshl_add_u32 v14, v15, 4, v14
v_lshlrev_b32 v99, 4, v14
s_mov_b32 s30, 0x0000ffff
s_mov_b32 s31, 0x0000ffff
s_mov_b32 s27, 0x71800000
s_mov_b32 s28, 0x44800000
s_mov_b32 s47, 0
s_mov_b32 s58, 0
s_mov_b32 s59, 0""")
    for i in range(8):
        k.e(f"v_mov_b32 v{VB+i}, 0x3f803f80")
    k.ts(0)
    k.e("s_waitcnt vmcnt(0)\ns_barrier")
    k.ts(1)
    k.lab("round")
    k.e(f"""s_lshl_b32 s20, s46, 15
v_add_u32 v{vKA}, s20, v3
s_add_u32 s21, s20, 65536
v_add_u32 v{vVA}, s21, v99
s_lshl_b32 s32, s3, 16
s_lshl_b32 s33, s47, 13
s_add_u32 s32, s32, s33
s_add_u32 s32, s32, {WO}
s_mov_b32 s25, 0
s_cmp_eq_u32 s46, 0
s_cbranch_scc1 {k.ref('noprio')}
s_setprio 1""")
    k.lab("noprio")
    for i in range(9):
        k.e(f"v_mov_b32 v{O+i}, 0\nv_mov_b32 v{OC+i}, 0")
    def rdK(T):
        k.e(f"ds_read_b128 {vr(KB,4)}, v{vKA} offset:{T*1024}")
    def rdV(T):
        k.e(f"""s_mov_b64 exec, s[30:31]
ds_read_b128 {vr(VB,4)}, v{vVA} offset:{T*1024}
ds_read_b128 {vr(VB+4,4)}, v{vVA} offset:{T*1024+512}
s_mov_b64 exec, -1""")
    def mfS(T):
        S = SA if (T & 1) == 0 else SB
        k.e(f"v_mfma_f32_32x32x16_bf16 {vr(S,16)}, {vr(KB,4)}, {vr(QF,4)}, {vr(CN,16)}")
    def q4(S, q):
        for i in range(4):
            k.e(f"v_exp_f32 v{S+4*q+i}, v{S+4*q+i}")
        for d in range(2):
            a = S + 4*q + 2*d
            k.e(f"v_cvt_pk_bf16_f32 v{P+2*q+d}, v{a}, v{a+1}")
    k.e("v_mov_b32 v13, 0xff7fffff")
    for T in range(0, NINIT, 2):
        k.e(f"""ds_read_b128 {vr(KB,4)}, v{vKA} offset:{T*1024}
ds_read_b128 {vr(P,4)}, v{vKA} offset:{(T+1)*1024}
s_waitcnt lgkmcnt(1)
v_mfma_f32_32x32x16_bf16 {vr(SA,16)}, {vr(KB,4)}, {vr(QF,4)}, 0
s_waitcnt lgkmcnt(0)
v_mfma_f32_32x32x16_bf16 {vr(SB,16)}, {vr(P,4)}, {vr(QF,4)}, 0
s_nop 11""")
        for i in range(8):
            k.e(f"v_max3_f32 v13, v{SA+2*i}, v{SA+2*i+1}, v13")
        k.e("s_nop 3")
        for i in range(8):
            k.e(f"v_max3_f32 v13, v{SB+2*i}, v{SB+2*i+1}, v13")
    k.e(f"""v_mov_b32 v14, v13
s_nop 1
v_permlane32_swap_b32 v14, v13
s_nop 1
v_max_f32 v13, v14, v13
v_ceil_f32 v13, v13
v_add_f32 v13, 0x42700000, v13
v_sub_f32 v{CN}, 0, v13""")
    for i in range(1, 16):
        k.e(f"v_mov_b32 v{CN+i}, v{CN}")
    k.e("s_mov_b32 s24, 0")
    k.e(f"s_branch {k.ref('reinit')}")
    NT = 32
    L_ = O + 8
    for T in range(NT):
        S = SA if (T & 1) == 0 else SB
        if (T & 7) == 0:
            k.lab(f"restart{T >> 3}")
            k.tsl()
        if T == 6:
            k.e(f"s_cmp_lg_u32 s47, 0\ns_cbranch_scc1 {k.ref('nobar')}\ns_waitcnt vmcnt(2)\ns_barrier")
            k.lab("nobar")
        if T == TSW:
            k.e("s_setprio 0")
        q4(S, 0)
        if T + 1 < NT:
            k.e("s_waitcnt lgkmcnt(2)")
            mfS(T + 1)
        if T + 2 < NT: rdK(T + 2)
        if T < 8:
            k.e(f"s_cmp_lg_u32 s47, 0\ns_cbranch_scc1 {k.ref(f'r1op{T}')}")
            for op in stage_ops[3*T:3*T+3]:
                k.e(op)
            k.e(f"s_branch {k.ref(f'opdone{T}')}")
            k.lab(f"r1op{T}")
            k.lab(f"opdone{T}")
        q4(S, 1)
        for i in range(4):
            k.e(f"v_exp_f32 v{S+8+i}, v{S+8+i}")
        if T > 0 and (T & 7) == 0:
            site = T >> 3
            k.e(f"""s_mov_b32 s24, {site}
s_cmp_eq_u32 s25, {site}
s_cbranch_scc1 {k.ref(f'ok{site}')}
v_cmp_ngt_f32 vcc, s27, v{L_}
s_cbranch_vccnz {k.ref('rollback')}""")
            k.lab(f"ok{site}")
            k.e(f"v_cmp_lt_f32 vcc, s28, v{L_}\ns_cbranch_vccnz {k.ref('renorm')}")
            for i in range(9):
                k.e(f"v_mov_b32 v{OC+i}, v{O+i}")
        k.e(f"s_waitcnt lgkmcnt({1 if T + 2 < NT else 0})")
        k.e(f"v_mfma_f32_32x32x16_bf16 {vr(O,16)}, {vr(VB,4)}, {vr(P,4)}, {vr(O,16)}")
        for d in range(2):
            k.e(f"v_cvt_pk_bf16_f32 v{P+4+d}, v{S+8+2*d}, v{S+8+2*d+1}")
        q4(S, 3)
        ct, s_ = T >> 3, T & 7
        k.e(f"s_add_u32 s33, s32, {ct*16384 + (s_>>2)*4096}\nbuffer_load_dwordx4 {vr(WOF+4*T,4)}, v3, s[8:11], s33 offen offset:{(s_&3)*1024}")
        k.e(f"v_mfma_f32_32x32x16_bf16 {vr(O,16)}, {vr(VB+4,4)}, {vr(P+4,4)}, {vr(O,16)}")
        if T + 1 < NT: rdV(T + 1)
    k.e(f"""s_cmp_eq_u32 s47, 0
s_cbranch_scc1 {k.ref('nopre')}
s_mov_b32 m0, {DUMP}
s_bitcmp1_b32 s3, 1
s_cbranch_scc1 {k.ref('preu')}
buffer_load_dword v0, s[60:63], s49 offen lds
s_branch {k.ref('pre2')}""")
    k.lab("preu")
    k.e("buffer_load_dword v0, s[64:67], s49 offen lds")
    k.lab("pre2")
    k.e("v_lshl_add_u32 v13, v3, 3, s43\nbuffer_load_dword v13, s[12:15], s44 offen lds")
    k.lab("nopre")
    k.e("s_nop 15\ns_nop 3")
    k.lab("restart4")
    k.e(f"""s_mov_b32 s24, 4
s_cmp_eq_u32 s25, 4
s_cbranch_scc1 {k.ref('rend')}
v_cmp_ngt_f32 vcc, s27, v{L_}
s_cbranch_vccnz {k.ref('rollback')}
s_branch {k.ref('rend')}""")
    k.lab("renorm")
    if TIMING: k.e("s_add_u32 s59, s59, 1")
    k.e(f"""v_frexp_exp_i32_f32 v13, v{L_}
s_nop 0
v_add_u32 v13, 60, v13
v_sub_u32 v14, 0, v13
v_cvt_f32_i32 v15, v13""")
    for i in range(9):
        k.e(f"v_ldexp_f32 v{O+i}, v{O+i}, v14")
    k.e("s_nop 7")
    for i in range(16):
        k.e(f"v_sub_f32 v{CN+i}, v{CN+i}, v15")
    k.e(f"s_branch {k.ref('reinit')}")
    k.lab("rollback")
    if TIMING: k.e("s_add_u32 s58, s58, 1")
    k.e("s_waitcnt lgkmcnt(0)\ns_mov_b32 s25, s24")
    for i in range(9):
        k.e(f"v_mov_b32 v{O+i}, v{OC+i}")
    k.e(f"""s_sub_u32 s20, s24, 1
s_lshl_b32 s20, s20, 13
v_add_u32 v12, s20, v{vKA}
v_mov_b32 v13, 0xff7fffff
s_mov_b32 s48, 8""")
    k.lab("rb1")
    k.e(f"""ds_read_b128 {vr(KB,4)}, v12
v_add_u32 v12, 1024, v12
s_waitcnt lgkmcnt(0)
v_mfma_f32_32x32x16_bf16 {vr(SB,16)}, {vr(KB,4)}, {vr(QF,4)}, {vr(CN,16)}
s_nop 15
s_nop 3""")
    for i in range(8):
        k.e(f"v_max3_f32 v13, v{SB+2*i}, v{SB+2*i+1}, v13")
    k.e(f"s_sub_u32 s48, s48, 1\ns_cmp_lg_u32 s48, 0\ns_cbranch_scc1 {k.ref('rb1')}")
    k.e(f"""v_mov_b32 v14, v13
s_nop 1
v_permlane32_swap_b32 v14, v13
s_nop 1
v_max_f32 v13, v14, v13
v_ceil_f32 v13, v13
v_add_f32 v13, 0x42700000, v13
v_max_f32 v13, 0, v13
v_cvt_i32_f32 v14, v13
v_sub_u32 v14, 0, v14""")
    for i in range(9):
        k.e(f"v_ldexp_f32 v{O+i}, v{O+i}, v14")
    for i in range(16):
        k.e(f"v_sub_f32 v{CN+i}, v{CN+i}, v13")
    k.e(f"""v_add_u32 v12, s20, v{vKA}
v_add_u32 v13, s20, v{vVA}
s_mov_b32 s48, 8""")
    k.lab("rb2")
    k.e(f"""ds_read_b128 {vr(KB,4)}, v12
s_mov_b64 exec, s[30:31]
ds_read_b128 {vr(VB,4)}, v13
ds_read_b128 {vr(VB+4,4)}, v13 offset:512
s_mov_b64 exec, -1
v_add_u32 v12, 1024, v12
v_add_u32 v13, 1024, v13
s_waitcnt lgkmcnt(0)
v_mfma_f32_32x32x16_bf16 {vr(SB,16)}, {vr(KB,4)}, {vr(QF,4)}, {vr(CN,16)}
s_nop 15
s_nop 3""")
    for q in range(4):
        q4(SB, q)
    k.e(f"""s_nop 1
v_mfma_f32_32x32x16_bf16 {vr(O,16)}, {vr(VB,4)}, {vr(P,4)}, {vr(O,16)}
v_mfma_f32_32x32x16_bf16 {vr(O,16)}, {vr(VB+4,4)}, {vr(P+4,4)}, {vr(O,16)}
s_sub_u32 s48, s48, 1
s_cmp_lg_u32 s48, 0
s_cbranch_scc1 {k.ref('rb2')}
s_nop 15
s_nop 3""")
    k.lab("reinit")
    k.e(f"""s_waitcnt lgkmcnt(0)
s_lshl_b32 s20, s24, 13
v_add_u32 v12, s20, v{vKA}
v_add_u32 v13, s20, v{vVA}
ds_read_b128 {vr(KB,4)}, v12
s_waitcnt lgkmcnt(0)
v_mfma_f32_32x32x16_bf16 {vr(SA,16)}, {vr(KB,4)}, {vr(QF,4)}, {vr(CN,16)}
ds_read_b128 {vr(KB,4)}, v12 offset:1024
s_mov_b64 exec, s[30:31]
ds_read_b128 {vr(VB,4)}, v13
ds_read_b128 {vr(VB+4,4)}, v13 offset:512
s_mov_b64 exec, -1
s_nop 11""")
    for site in range(4):
        k.e(f"s_cmp_eq_u32 s24, {site}\ns_cbranch_scc1 {k.ref(f'restart{site}')}")
    k.e(f"s_branch {k.ref('restart4')}")
    k.lab("rend")
    k.e("s_setprio 0")
    k.tsl()
    k.e(f"""s_mul_i32 s33, s45, 2560
s_add_u32 s33, s33, {XBUF}
v_lshlrev_b32 v14, 2, v2
v_add_u32 v14, s33, v14
s_cmp_eq_u32 s46, 0
s_cbranch_scc1 {k.ref('nopub')}""")
    for i in range(9):
        k.e(f"ds_write_b32 v14, v{O+i} offset:{256*i}")
    k.e(f"ds_write_b32 v14, v{CN} offset:{256*9}")
    k.lab("nopub")
    k.e("s_waitcnt lgkmcnt(0)\ns_barrier")
    k.e(f"s_cmp_lg_u32 s46, 0\ns_cbranch_scc1 {k.ref('nomerge')}")
    for i in range(10):
        k.e(f"ds_read_b32 v{SA+i}, v14 offset:{256*i}")
    k.e("s_waitcnt lgkmcnt(0)")
    k.e(f"""v_min_f32 v13, v{CN}, v{SA+9}
v_sub_f32 v14, v13, v{CN}
v_sub_f32 v15, v13, v{SA+9}
v_exp_f32 v14, v14
v_exp_f32 v15, v15
s_nop 0""")
    for i in range(9):
        k.e(f"v_mul_f32 v{O+i}, v{O+i}, v14")
    for i in range(9):
        k.e(f"v_fmac_f32 v{O+i}, v{SA+i}, v15")
    k.e(f"v_rcp_f32 v13, v{L}\ns_nop 0")
    for i in range(8):
        k.e(f"v_mul_f32 v{O+i}, v{O+i}, v13")
    for d in range(4):
        k.e(f"v_cvt_pk_bf16_f32 v{SA+d}, v{O+2*d}, v{O+2*d+1}")
    k.e(f"""v_bfe_u32 v14, v2, 4, 1
s_lshl_b32 s33, s45, 1
v_add_u32 v14, s33, v14
v_mul_u32_u24 v14, 528, v14
v_and_b32 v15, 15, v2
v_lshl_add_u32 v14, v15, 5, v14
v_lshrrev_b32 v15, 5, v2
v_lshl_add_u32 v14, v15, 3, v14
v_add_u32 v14, {OBUF}, v14
ds_write_b64 v14, {vr(SA,2)}
ds_write_b64 v14, {vr(SA+2,2)} offset:16
s_waitcnt lgkmcnt(0)""")
    k.lab("nomerge")
    k.e("s_barrier")
    k.tsl()
    k.e(f"""v_and_b32 v14, 7, v2
v_mul_u32_u24 v14, 528, v14
v_lshrrev_b32 v15, 4, v2
v_lshl_add_u32 v14, v15, 4, v14
v_add_u32 v14, {OBUF}, v14""")
    for s in range(8):
        k.e(f"ds_read_b128 {vr(SA+4*s,4)}, v14 offset:{64*s}")
    k.e(f"s_waitcnt vmcnt(2)\ns_cmp_lg_u32 s47, 0\ns_cbranch_scc1 {k.ref('proj1')}\ns_waitcnt vmcnt(0)")
    for s in range(8):
        k.e(f"s_waitcnt lgkmcnt({7-s})")
        for ct in range(4):
            c = "0" if s == 0 else vr(ACC+4*ct, 4)
            k.e(f"v_mfma_f32_16x16x32_bf16 {vr(ACC+4*ct,4)}, {vr(WOF+4*(8*ct+s),4)}, {vr(SA+4*s,4)}, {c}")
    for i in range(4):
        k.e(f"v_mov_b32 v{QF+i}, v{QF1+i}")
    k.e(f"""v_lshl_add_u32 v13, s3, 6, v2
s_lshr_b32 s20, s2, 3
s_and_b32 s21, s2, 7
s_lshr_b32 s21, s21, 1
s_mul_i32 s21, s21, 896
s_mul_i32 s22, s20, {16*3584}
s_add_u32 s49, s21, s22
v_bfe_u32 v14, v13, 3, 4
v_mul_u32_u24 v14, 3584, v14
v_and_b32 v15, 7, v13
v_lshl_add_u32 v0, v15, 7, v14
s_mul_i32 s44, s20, {56*1024}
s_lshl_b32 s43, s3, 13""")
    k.e(f"s_mov_b32 s47, 1")
    k.e(f"s_branch {k.ref('round')}")
    k.lab("proj1")
    GA, SBB, CBB, XR = 64, 80, 96, 16
    k.e(f"""s_lshl_b32 s33, s3, 6
v_lshl_add_u32 v4, v15, 2, s33
v_lshlrev_b32 v5, 2, v4
v_add_u32 v5, {MBUF}, v5
v_and_b32 v6, 7, v2
v_lshlrev_b32 v6, 10, v6
v_lshl_add_u32 v6, v4, 1, v6
v_add_u32 v7, {XIN}, v6""")
    for s in range(8):
        k.e(f"s_waitcnt lgkmcnt({7-s})")
        for ct in range(4):
            k.e(f"v_mfma_f32_16x16x32_bf16 {vr(ACC+4*ct,4)}, {vr(WOF+4*(8*ct+s),4)}, {vr(SA+4*s,4)}, {vr(ACC+4*ct,4)}")
    for i in range(3):
        for ct in range(4):
            k.e(f"ds_read_b128 {vr(64+16*i+4*ct,4)}, v5 offset:{2048*i + 64*ct}")
    k.e("s_waitcnt lgkmcnt(4)")
    for ct in range(4):
        k.e(f"ds_read_b64 {vr(XR+2*ct,2)}, v7 offset:{32*ct}")
    k.e("s_waitcnt lgkmcnt(0)\ns_nop 3")
    k.tsl()
    X = 128; PK = 144; T1 = 7
    for i in range(0, 16, 2):
        round_bf16_pair(k, ACC+i, ACC+i+1, T1)
    for i in range(16):
        k.e(f"v_mul_f32 v{ACC+i}, v{ACC+i}, v{GA+i}")
    for i in range(0, 16, 2):
        round_bf16_pair(k, ACC+i, ACC+i+1, T1)
    for d in range(8):
        k.e(f"v_lshlrev_b32 v{X+2*d}, 16, v{XR+d}\nv_and_b32 v{X+2*d+1}, 0xffff0000, v{XR+d}")
    for i in range(16):
        k.e(f"v_add_f32 v{X+i}, v{X+i}, v{ACC+i}")
    for d in range(8):
        k.e(f"v_cvt_pk_bf16_f32 v{PK+d}, v{X+2*d}, v{X+2*d+1}")
    for d in range(8):
        k.e(f"v_lshlrev_b32 v{X+2*d}, 16, v{PK+d}\nv_and_b32 v{X+2*d+1}, 0xffff0000, v{PK+d}")
    k.e(f"""v_and_b32 v8, 15, v2
v_cmp_gt_u32 vcc, 8, v8
s_add_u32 s38, s37, {X1}
s_and_saveexec_b64 s[40:41], vcc""")
    for ct in range(4):
        k.e(f"buffer_store_dwordx2 {vr(PK+2*ct,2)}, v6, s[8:11], s38 offen offset:{32*ct}")
    k.e("s_mov_b64 exec, s[40:41]")
    def xreduce(reg, tmp):
        k.e(f"""v_mov_b32 v{tmp}, v{reg}
s_nop 1
v_permlane16_swap_b32 v{tmp}, v{reg}
s_nop 1
v_add_f32 v{reg}, v{tmp}, v{reg}
v_mov_b32 v{tmp}, v{reg}
s_nop 1
v_permlane32_swap_b32 v{tmp}, v{reg}
s_nop 1
v_add_f32 v{reg}, v{tmp}, v{reg}""")
    SM = 10; M2 = 11
    k.e(f"v_add_f32 v{SM}, v{X}, v{X+1}")
    for i in range(2, 16):
        k.e(f"v_add_f32 v{SM}, v{SM}, v{X+i}")
    xreduce(SM, 9)
    k.e(f"s_mov_b32 s42, 0x3c800000\nv_mul_f32 v{SM}, s42, v{SM}")
    k.e(f"v_sub_f32 v160, v{X}, v{SM}\nv_mul_f32 v{M2}, v160, v160")
    for i in range(1, 16):
        k.e(f"v_sub_f32 v160, v{X+i}, v{SM}\nv_fmac_f32 v{M2}, v160, v160")
    xreduce(M2, 9)
    k.e(f"""v_lshlrev_b32 v9, 3, v2
s_lshl_b32 s39, s3, 6
v_add_u32 v9, s39, v9
v_cmp_gt_u32 vcc, 8, v2
s_and_saveexec_b64 s[40:41], vcc
ds_write_b64 v9, v[{SM}:{M2}]
s_mov_b64 exec, s[40:41]
s_waitcnt lgkmcnt(0)
s_barrier
v_and_b32 v9, 7, v2
v_lshlrev_b32 v9, 3, v9""")
    for w in range(8):
        k.e(f"ds_read_b64 v[{160+2*w}:{161+2*w}], v9 offset:{64*w}")
    k.e("s_waitcnt lgkmcnt(0)")
    k.e(f"v_add_f32 v{SM}, v160, v162\nv_add_f32 v{M2}, v161, v163")
    for w in range(2, 8):
        k.e(f"v_add_f32 v{SM}, v{SM}, v{160+2*w}\nv_add_f32 v{M2}, v{M2}, v{161+2*w}")
    k.e(f"s_mov_b32 s42, 0x3e000000\nv_mul_f32 v{SM}, s42, v{SM}")
    k.e(f"v_sub_f32 v160, v160, v{SM}\nv_mul_f32 v176, v160, v160")
    for w in range(1, 8):
        k.e(f"v_sub_f32 v{160+2*w}, v{160+2*w}, v{SM}\nv_fmac_f32 v176, v{160+2*w}, v{160+2*w}")
    k.e(f"""s_mov_b32 s42, 0x42800000
v_fmac_f32 v{M2}, s42, v176
s_mov_b32 s42, 0x3b000000
v_mov_b32 v9, 0x3727c5ac
v_fma_f32 v{M2}, v{M2}, s42, v9
v_rsq_f32 v{M2}, v{M2}""")
    for i in range(16):
        k.e(f"v_sub_f32 v{X+i}, v{X+i}, v{SM}")
    for i in range(16):
        k.e(f"v_mul_f32 v{X+i}, v{X+i}, v{M2}")
    for i in range(16):
        k.e(f"v_add_f32 v{CBB+i}, 1.0, v{CBB+i}")
    for i in range(0, 16, 2):
        round_bf16_pair(k, CBB+i, CBB+i+1, T1)
    for i in range(16):
        k.e(f"v_fma_f32 v{X+i}, v{X+i}, v{CBB+i}, v{SBB+i}")
    for d in range(8):
        k.e(f"v_cvt_pk_bf16_f32 v{PK+d}, v{X+2*d}, v{X+2*d+1}")
    k.e(f"""v_and_b32 v8, 7, v2
s_and_b32 s43, s2, 3
s_lshl_b32 s43, s43, 3
v_add_u32 v8, s43, v8
v_lshrrev_b32 v9, 5, v2
v_lshl_add_u32 v8, v9, 5, v8
v_lshlrev_b32 v8, 4, v8
v_bfe_u32 v9, v2, 4, 1
v_lshl_add_u32 v8, v9, 3, v8
s_lshr_b32 s43, s2, 2
s_lshl_b32 s43, s43, 15
s_lshl_b32 s44, s3, 12
s_add_u32 s43, s43, s44
s_add_u32 s43, s43, {H2F}
v_and_b32 v9, 15, v2
v_cmp_gt_u32 vcc, 8, v9
s_and_saveexec_b64 s[40:41], vcc""")
    for ct in range(4):
        k.e(f"buffer_store_dwordx2 {vr(PK+2*ct,2)}, v8, s[8:11], s43 offen offset:{1024*ct}")
    if TIMING:
        k.e("s_add_u32 s76, s96, s58\ns_add_u32 s78, s96, s59")
        k.nts = 4
    k.lab("end")
    k.e("s_endpgm")
    return k, GRID, 512, LDS, 256
```

```python
import sys, os
TIMING = os.environ.get('TIMING', '0') == '1'

MODP  = 0x000000
MODF  = 0x020000
WQKV  = 0x100000
WO    = 0x200000
WGU   = 0x300000
WD    = 0x700000
QB    = 0x900000
KF    = 0xB00000
VF    = 0xB10000
X1    = 0xC00000
H2F   = 0xE00000
HHF   = 0x1000000
WS_SIZE = 0x2000000

A_X, A_WQ, A_WK, A_WV, A_WO, B_X, B_WG, B_WU, B_WD, A_C, A_WMOD, A_OUT, A_DBG, A_WS = [8*i for i in range(14)]

class Kern:
    def __init__(self, name):
        self.name = name
        self.L = []
        self.uid = 0
    def e(self, s):
        for ln in s.strip('\n').split('\n'):
            self.L.append("    " + ln.strip())
    def c(self, s):
        self.L.append("    ; " + s)
    def lab(self, l):
        self.L.append(f"{self.name}_{l}:")
    def ref(self, l):
        return f"{self.name}_{l}"
    def ts(self, n):
        if TIMING:
            self.e(f"s_memrealtime s[{72+2*n}:{73+2*n}]")
            self.nts = max(getattr(self, 'nts', 0), n + 1)
    def tsl(self, reg=1):
        if TIMING:
            self.e(f"s_memtime s[90:91]\ns_waitcnt lgkmcnt(0)\ns_nop 0\ns_mov_b32 m0, s71\ns_nop 0\nv_writelane_b32 v{reg}, s90, m0\ns_add_u32 s71, s71, 1")
            self.tslreg = reg
    def srd(self, s, p, size):
        self.e(f"s_mov_b32 s{s}, s{p}\ns_and_b32 s{s+1}, s{p+1}, 0xffff\ns_mov_b32 s{s+2}, {size}\ns_mov_b32 s{s+3}, 0x00020000")
    def text(self, tsidx=None):
        h = f".globl {self.name}\n.p2align 8\n.type {self.name},@function\n{self.name}:\n"
        if tsidx is None:
            return h + "\n".join(self.L) + "\n"
        L = ["    s_memrealtime s[96:97]", "    s_memtime s[88:89]", "    v_lshrrev_b32 v1, 6, v0", "    s_nop 1", "    v_readfirstlane_b32 s98, v1", "    s_mov_b32 s71, 0"]
        for ln in self.L:
            if ln.strip() == "s_endpgm":
                L.append(f"    s_branch {self.name}_fin")
            else:
                L.append(ln)
        L.append(f"{self.name}_fin:")
        L += ["    " + x for x in f'''s_mov_b64 exec, -1
s_waitcnt vmcnt(0) lgkmcnt(0)
s_memrealtime s[100:101]
s_load_dwordx2 s[92:93], s[0:1], 104
s_waitcnt lgkmcnt(0)
s_and_b32 s93, s93, 0xffff
s_mov_b32 s94, 0x2000000
s_mov_b32 s95, 0x00020000
s_lshl_b32 s99, s2, 4
s_add_u32 s99, s99, s98
s_lshl_b32 s99, s99, 3
s_add_u32 s99, s99, {0x1D00000 + tsidx*0x40000}
v_mov_b32 v4, s96
v_mov_b32 v5, s100
v_mov_b32 v2, 0
buffer_store_dwordx2 v[4:5], v2, s[92:95], s99 offen'''.split("\n")]
        nts = getattr(self, 'nts', 0)
        if nts:
            L.append(f"    s_lshl_b32 s99, s2, 4\n    s_add_u32 s99, s99, s98\n    s_lshl_b32 s99, s99, 5\n    s_add_u32 s99, s99, {0x1E00000 + tsidx*0x40000}")
            for n in range(nts):
                L.append(f"    s_sub_u32 s{72+2*n}, s{72+2*n}, s96\n    v_mov_b32 v0, s{72+2*n}\n    buffer_store_dword v0, v2, s[92:95], s99 offen offset:{4*n}")
        if getattr(self, 'tslreg', None) is not None:
            L.append(f"    s_lshl_b32 s99, s2, 4\n    s_add_u32 s99, s99, s98\n    s_lshl_b32 s99, s99, 8\n    s_add_u32 s99, s99, 0x1800000\n    v_mbcnt_lo_u32_b32 v2, -1, 0\n    v_mbcnt_hi_u32_b32 v2, -1, v2\n    v_lshlrev_b32 v2, 2, v2\n    v_subrev_u32 v{self.tslreg}, s88, v{self.tslreg}\n    buffer_store_dword v{self.tslreg}, v2, s[92:95], s99 offen")
        L.append("    s_endpgm")
        return h + "\n".join(L) + "\n"
    def desc(self, nv, ns=102, acc=None):
        if isinstance(nv, tuple): nv, acc = nv
        if acc is None: acc = (nv + 3) // 4 * 4
        return f""".p2align 6
.amdhsa_kernel {self.name}
  .amdhsa_next_free_vgpr {nv}
  .amdhsa_next_free_sgpr {ns}
  .amdhsa_accum_offset {acc}
  .amdhsa_group_segment_fixed_size 0
  .amdhsa_kernarg_size 112
  .amdhsa_user_sgpr_count 2
  .amdhsa_user_sgpr_kernarg_segment_ptr 1
  .amdhsa_system_sgpr_workgroup_id_x 1
.end_amdhsa_kernel
"""

def vr(a, n):
    return f"v[{a}:{a+n-1}]"

def gen_k0():
    k = Kern("k0_kernel")
    NMOD = 96
    ranges = [("wq", 32), ("wo", 32), ("kv", 8), ("xp", 64)]
    total = NMOD + sum(n for _, n in ranges)
    k.e(f"s_cmp_ge_u32 s2, {total}\ns_cbranch_scc1 {k.ref('end')}")
    k.e("s_load_dwordx16 s[16:31], s[0:1], 0\ns_load_dwordx8 s[32:39], s[0:1], 64\ns_load_dwordx4 s[40:43], s[0:1], 96")
    k.e("v_lshrrev_b32 v1, 6, v0\nv_and_b32 v2, 63, v0")
    k.e("s_nop 0\nv_readfirstlane_b32 s3, v1")
    k.e("s_waitcnt lgkmcnt(0)")
    k.srd(8, 42, WS_SIZE)
    k.e(f"s_cmp_ge_u32 s2, {NMOD}\ns_cbranch_scc1 {k.ref('pack')}")
    k.srd(4, 36, 512*3072*2)
    k.srd(12, 34, 1024)
    k.e("""v_and_b32 v3, 3, v0
v_lshrrev_b32 v4, 2, v0
v_lshlrev_b32 v6, 4, v4
buffer_load_dwordx4 v[8:11], v6, s[12:15], 0 offen
s_mov_b32 s47, 49152
v_mul_lo_u32 v7, v4, s47
s_lshl_b32 s48, s2, 6
v_lshl_add_u32 v5, v3, 4, s48
v_add_u32 v7, v7, v5""")
    for i in range(8):
        k.e(f"s_mov_b32 s{50+i}, {6144*i}")
    for i in range(8):
        k.e(f"buffer_load_dwordx4 v[{16+4*i}:{19+4*i}], v7, s[4:7], s{50+i} offen")
    k.e("s_waitcnt vmcnt(8)")
    for d in range(4):
        k.e(f"v_lshlrev_b32 v{48+2*d}, 16, v{8+d}\nv_and_b32 v{49+2*d}, 0xffff0000, v{8+d}")
    k.e("s_mov_b32 s60, 0xbfb8aa3b")
    for i in range(8):
        k.e(f"v_mul_f32 v{56+i}, s60, v{48+i}")
    for i in range(8):
        k.e(f"v_exp_f32 v{56+i}, v{56+i}")
    k.e("s_nop 0")
    for i in range(8):
        k.e(f"v_add_f32 v{56+i}, 1.0, v{56+i}")
    for i in range(8):
        k.e(f"v_rcp_f32 v{56+i}, v{56+i}")
    k.e("s_nop 0")
    for i in range(8):
        k.e(f"v_mul_f32 v{48+i}, v{48+i}, v{56+i}")
    for d in range(4):
        k.e(f"v_cvt_pk_bf16_f32 v{56+d}, v{48+2*d}, v{49+2*d}")
    for d in range(4):
        k.e(f"v_lshlrev_b32 v{48+2*d}, 16, v{56+d}\nv_and_b32 v{49+2*d}, 0xffff0000, v{56+d}")
    k.e("s_waitcnt vmcnt(0)")
    for i in range(8):
        for d in range(4):
            src = 16 + 4*i + d
            k.e(f"v_lshlrev_b32 v56, 16, v{src}\nv_and_b32 v57, 0xffff0000, v{src}")
            if i == 0:
                k.e(f"v_mul_f32 v{64+2*d}, v{48+i}, v56\nv_mul_f32 v{65+2*d}, v{48+i}, v57")
            else:
                k.e(f"v_fmac_f32 v{64+2*d}, v{48+i}, v56\nv_fmac_f32 v{65+2*d}, v{48+i}, v57")
    k.e("""v_mul_u32_u24 v58, 144, v4
v_lshl_add_u32 v58, v3, 5, v58
ds_write_b128 v58, v[64:67]
ds_write_b128 v58, v[68:71] offset:16
s_waitcnt lgkmcnt(0)
s_barrier
v_and_b32 v59, 31, v0
v_lshrrev_b32 v60, 5, v0
v_mul_u32_u24 v61, 1152, v60
v_lshl_add_u32 v61, v59, 2, v61""")
    for i in range(8):
        k.e(f"ds_read_b32 v{64+i}, v61 offset:{144*i}")
    k.e("s_waitcnt lgkmcnt(0)")
    for i in range(1, 8):
        k.e(f"v_add_f32 v64, v64, v{64+i}")
    k.e("""v_lshlrev_b32 v62, 2, v0
ds_write_b32 v62, v64 offset:9216
s_waitcnt lgkmcnt(0)
s_barrier
v_cmp_gt_u32 vcc, 32, v0
s_and_saveexec_b64 s[54:55], vcc""")
    k.e(f"s_cbranch_execz {k.ref('end')}")
    for i in range(8):
        k.e(f"ds_read_b32 v{64+i}, v62 offset:{9216 + 128*i}")
    k.e("s_waitcnt lgkmcnt(0)")
    for i in range(1, 8):
        k.e(f"v_add_f32 v64, v64, v{64+i}")
    k.e(f"""v_cvt_pk_bf16_f32 v64, v64, v64
v_lshlrev_b32 v64, 16, v64
s_lshl_b32 s56, s2, 7
s_add_u32 s56, s56, {MODF}
buffer_store_dword v64, v62, s[8:11], s56 offen
s_endpgm""")
    k.lab("pack")
    start = NMOD
    cfg = {
        "wq": (18, 512, 512, WQKV, 5, 32768, 4, 0, 32),
        "wo": (24, 512, 512, WO, 4, 16384, 5, 0, 16),
        "wg": (28, 512, 1792, WGU, 4, 32768, 4, 0, 32),
        "wu": (30, 512, 1792, WGU, 4, 32768, 4, 16, 32),
        "wd": (32, 1792, 512, WD, 5, 114688, 4, 0, 32),
        "wk": (20, 512, 16, WQKV + 16*32768, 4, 32768, 4, 0, 32),
        "wv": (22, 512, 16, WQKV + 16*32768, 4, 32768, 4, 16, 32),
    }
    def pack_body(nm):
        p, K, N, base, lc, tstride, lk, ioff, R = cfg[nm]
        rowb = N * 2
        k.srd(4, p, K * N * 2)
        k.e(f"s_mov_b32 s60, {8*rowb}\nv_mul_lo_u32 v12, v11, s60\nv_lshl_add_u32 v12, v10, 1, v12")
        for j in range(8):
            k.e(f"s_mov_b32 s{61+j}, {j*rowb}")
        for j in range(8):
            k.e(f"buffer_load_dwordx2 v[{16+2*j}:{17+2*j}], v12, s[4:7], s{61+j} offen")
        k.e(f"""v_lshrrev_b32 v13, {lc}, v10
s_mov_b32 s60, {tstride}
v_mul_lo_u32 v13, v13, s60
v_lshrrev_b32 v14, {lk-3}, v11
v_lshl_add_u32 v13, v14, 10, v13
v_and_b32 v14, {(1 << (lk-3)) - 1}, v11
v_mul_u32_u24 v14, {R}, v14
v_and_b32 v15, {(1 << lc) - 1}, v10
v_add_u32 v14, v14, v15
v_add_u32 v14, {ioff}, v14
v_lshl_add_u32 v13, v14, 4, v13
v_add_u32 v13, {base}, v13
s_mov_b32 s70, 0x05040100
s_mov_b32 s71, 0x07060302
s_waitcnt vmcnt(0)""")
        for c in range(4):
            d = c >> 1
            sel = 70 + (c & 1)
            for m in range(4):
                k.e(f"v_perm_b32 v{32+4*c+m}, v{16+2*(2*m+1)+d}, v{16+2*(2*m)+d}, s{sel}")
        for c in range(4):
            k.e(f"buffer_store_dwordx4 v[{32+4*c}:{35+4*c}], v13, s[8:11], 0 offen offset:{16*c}")
        k.e("s_endpgm")
    for nm, n in ranges:
        nxt = start + n
        k.e(f"s_cmp_ge_u32 s2, {nxt}\ns_cbranch_scc1 {k.ref('p_after_'+nm)}")
        k.e(f"s_sub_u32 s44, s2, {start}\ns_lshl_b32 s44, s44, 2\ns_add_u32 s44, s44, s3")
        if nm in ("wq", "wo", "wg", "wu"):
            k.e("""s_lshr_b32 s45, s44, 6
s_and_b32 s46, s44, 63
s_lshl_b32 s45, s45, 8
v_lshl_add_u32 v10, v2, 2, s45
v_mov_b32 v11, s46""")
            pack_body(nm)
        elif nm == "wd":
            k.e("""s_and_b32 s45, s44, 1
s_lshr_b32 s46, s44, 1
s_lshl_b32 s45, s45, 8
v_lshl_add_u32 v10, v2, 2, s45
v_mov_b32 v11, s46""")
            pack_body(nm)
        elif nm == "wp":
            k.e(f"""s_and_b32 s45, s2, 7
s_sub_u32 s46, s2, {start}
s_lshr_b32 s46, s46, 3
s_cmp_ge_u32 s46, 16
s_cbranch_scc1 {k.ref('wpd')}
s_lshr_b32 s47, s45, 1
s_mul_i32 s47, s47, 896
s_and_b32 s48, s46, 7
s_mul_i32 s48, s48, {64*3584}
s_add_u32 s47, s47, s48
v_lshrrev_b32 v10, 3, v0
v_mul_u32_u24 v10, 3584, v10
v_and_b32 v11, 7, v0
v_lshl_add_u32 v10, v11, 7, v10
s_add_u32 s48, s47, {32*3584}
s_cmp_ge_u32 s46, 8
s_cbranch_scc1 {k.ref('wpu')}""")
            k.srd(4, 28, 512*1792*2)
            k.e("buffer_load_dword v12, v10, s[4:7], s47 offen\nbuffer_load_dword v13, v10, s[4:7], s48 offen\ns_endpgm")
            k.lab("wpu")
            k.srd(4, 30, 512*1792*2)
            k.e("buffer_load_dword v12, v10, s[4:7], s47 offen\nbuffer_load_dword v13, v10, s[4:7], s48 offen\ns_endpgm")
            k.lab("wpd")
            k.srd(4, 32, 1792*512*2)
            k.e(f"s_sub_u32 s46, s46, 16\ns_mul_i32 s47, s46, {10*32768}\nv_lshlrev_b32 v10, 7, v0")
            for i in range(10):
                k.e(f"buffer_load_dword v{12+i}, v10, s[4:7], s47 offen\ns_add_u32 s47, s47, 32768")
            k.e("s_endpgm")
        elif nm == "xp":
            k.srd(4, 16, 2048*512*2)
            k.e(f"""s_and_b32 s45, s2, 7
s_sub_u32 s46, s2, {start}
s_lshr_b32 s46, s46, 3
s_lshl_b32 s45, s45, 18
s_lshl_b32 s46, s46, 15
s_add_u32 s45, s45, s46
v_lshlrev_b32 v10, 7, v0
buffer_load_dword v11, v10, s[4:7], s45 offen
s_endpgm""")
        else:
            k.e(f"s_cmp_ge_u32 s44, 8\ns_cbranch_scc1 {k.ref('end')}")
            k.e("""s_and_b32 s46, s44, 3
s_lshl_b32 s46, s46, 4
v_and_b32 v10, 3, v2
v_lshlrev_b32 v10, 2, v10
v_lshrrev_b32 v11, 2, v2
v_add_u32 v11, s46, v11
s_cmp_ge_u32 s44, 4""")
            k.e(f"s_cbranch_scc1 {k.ref('p_wv')}")
            pack_body("wk")
            k.lab("p_wv")
            pack_body("wv")
        k.lab("p_after_" + nm)
        start = nxt
    k.lab("end")
    k.e("s_endpgm")
    return k, total, 256, 10240, 72


def build(which=None):
    ks = []
    ks.append(gen_k0())
    import gen_rest
    ks += gen_rest.more()
    if which is not None:
        ks = ks[:which]
    hdr = open('adaLN_cond__grouped_kv_mqa__glu_gated_reglu__prompt.s.ref').read().split('; Override')[0]
    s = hdr
    for k, grid, blk, lds, nv in ks:
        s += f"; @launch kernel={k.name} grid=({grid},1,1) block=({blk},1,1) lds={lds}\n"
    s += '.amdgcn_target "amdgcn-amd-amdhsa--gfx950"\n.text\n'
    for i, (k, *_) in enumerate(ks):
        s += k.text(i if TIMING else None)
    s += '.section .rodata,"a"\n'
    for k, grid, blk, lds, nv in ks:
        s += k.desc(nv)
    return s

if __name__ == "__main__":
    out = sys.argv[1] if len(sys.argv) > 1 else "adaLN_cond__grouped_kv_mqa__glu_gated_reglu__prompt.s"
    which = int(sys.argv[2]) if len(sys.argv) > 2 else None
    open(out, "w").write(build(which))
    print("wrote", out)
```
